```python
import torch

def _softmax(x, axis=-1):
    return torch.softmax(x, dim=axis)
def _gelu(x):
    return torch.nn.functional.gelu(x, approximate="tanh")
def _silu(x):
    return torch.nn.functional.silu(x)
def _sigmoid(x):
    return torch.sigmoid(x)
def _layernorm(x, axis=-1, eps=1e-5):
    m = x.mean(dim=axis, keepdim=True)
    v = x.var(dim=axis, keepdim=True, unbiased=False)
    return (x - m) / torch.sqrt(v + eps)
def _scatter_add(tgt, idx, src, axis=0):
    return tgt.clone().index_add_(axis, idx, src)
def _segment_sum(src, seg, n):
    out = torch.zeros((n,) + src.shape[1:], dtype=src.dtype)
    return out.index_add_(0, seg, src)
def _pad(x, pw):
    flat = tuple(v for pair in reversed(pw) for v in pair)
    return torch.nn.functional.pad(x, flat)

kernel_name = 'recurrent_scan__ssm_conv_s5__dense_activation_squared_relu__prompt'

def setup_inputs():

    _w = (lambda a: (lambda t: t.to(torch.bfloat16) if t.is_floating_point() else t)(torch.as_tensor(a)))
    def _A_setup():
        B, S, D = 1, 2048, 640
        P = D
        Lambda_re = -0.5 * (lambda _x: torch.exp(torch.as_tensor(_x)))((lambda *s: torch.randn(*s, dtype=torch.bfloat16) * 0.2)(P))
        Lambda_im = (lambda *s: torch.randn(*s, dtype=torch.bfloat16) * 0.4)(P) * 1.0
        B_re = (lambda *s: torch.randn(*s, dtype=torch.bfloat16) * 0.2)(P, D) * (D ** -0.5)
        B_im = (lambda *s: torch.randn(*s, dtype=torch.bfloat16) * 0.2)(P, D) * (D ** -0.5)
        C_re = (lambda *s: torch.randn(*s, dtype=torch.bfloat16) * 0.2)(D, P) * (P ** -0.5)
        C_im = (lambda *s: torch.randn(*s, dtype=torch.bfloat16) * 0.2)(D, P) * (P ** -0.5)
        log_dt = (lambda *s: torch.randn(*s, dtype=torch.bfloat16) * 0.2)(P) * 0.3 - 2.0
        Dskip = (lambda *s: torch.randn(*s, dtype=torch.bfloat16) * 0.05)(D)
        return {
            "x": _w((lambda *s: torch.randn(*s, dtype=torch.bfloat16) * 0.05)(B, S, D)),
            "Lambda_re": _w(Lambda_re),
            "Lambda_im": _w(Lambda_im),
            "B_re": _w(B_re),
            "B_im": _w(B_im),
            "C_re": _w(C_re),
            "C_im": _w(C_im),
            "log_dt": _w(log_dt),
            "Dskip": _w(Dskip),
        }
    _A_in = _A_setup()

    def _B_setup():
        B, S, D, F = 1, 2048, 640, 1536
        return {
            "x": _w((lambda *s: torch.randn(*s, dtype=torch.bfloat16) * 0.05)(B, S, D)),
            "w1": _w((lambda *s: torch.randn(*s, dtype=torch.bfloat16) * 0.05)(D, F)),
            "b1": _w((lambda *s: torch.randn(*s, dtype=torch.bfloat16) * 0.4)(F)),
            "w2": _w((lambda *s: torch.randn(*s, dtype=torch.bfloat16) * 0.05)(F, D)),
            "b2": _w((lambda *s: torch.randn(*s, dtype=torch.bfloat16) * 1.6)(D)),
        }
    _B_in = _B_setup()

    return {
        "A_x": _A_in["x"],
        "A_Lambda_re": _A_in["Lambda_re"],
        "A_Lambda_im": _A_in["Lambda_im"],
        "A_B_re": _A_in["B_re"],
        "A_B_im": _A_in["B_im"],
        "A_C_re": _A_in["C_re"],
        "A_C_im": _A_in["C_im"],
        "A_log_dt": _A_in["log_dt"],
        "A_Dskip": _A_in["Dskip"],
        "B_x": _B_in["x"],
        "B_w1": _B_in["w1"],
        "B_b1": _B_in["b1"],
        "B_w2": _B_in["w2"],
        "B_b2": _B_in["b2"],
    }

def reference(A_x, A_Lambda_re, A_Lambda_im, A_B_re, A_B_im, A_C_re, A_C_im, A_log_dt, A_Dskip, B_x, B_w1, B_b1, B_w2, B_b2):
    def _A_ref(x, Lambda_re, Lambda_im, B_re, B_im, C_re, C_im, log_dt, Dskip):
        Bsz, L, H = x.shape
        Lam = Lambda_re + 1j * Lambda_im
        Bmat = B_re + 1j * B_im
        Cmat = C_re + 1j * C_im
        dt = torch.exp(log_dt)
        Lam_bar = torch.exp(dt * Lam)
        B_bar = ((Lam_bar - 1.0) / Lam)[:, None] * Bmat
        Bu = torch.einsum("bld,pd->blp", x + 0j, B_bar)
        h = torch.zeros_like(Bu[:, 0, :])
        hs = []
        for t in range(L):
            h = Lam_bar[None, :] * h + Bu[:, t, :]
            hs.append(h)
        hseq = torch.stack(hs, 1)
        y = 2.0 * torch.einsum("blp,dp->bld", hseq, Cmat).real + x * Dskip[None, None, :]
        return y

    def _B_ref(x, w1, b1, w2, b2):
        h = torch.einsum("bsd,df->bsf", x, w1) + b1
        zero = torch.zeros_like(h)
        r = torch.where(h > zero, h, zero)
        h = r * r
        out = torch.einsum("bsf,fd->bsd", h, w2) + b2
        return out

    x = A_x
    xn = _layernorm(x, axis=-1)
    s = _A_ref(xn, A_Lambda_re, A_Lambda_im, A_B_re, A_B_im, A_C_re, A_C_im, A_log_dt, A_Dskip)
    g = _silu(_B_ref(xn, B_w1, B_b1, B_w2, B_b2))
    return x + s * g
```

```python
KN = 'recurrent_scan__ssm_conv_s5__dense_activation_squared_relu__prompt'
HEADER_COMMON = """; Kernarg layout (136 bytes, ptrs only, base s[0:1]):
"""
class Asm:
    def __init__(self):
        self.lines = []
    def __call__(self, s=''):
        for l in s.split('\n'):
            self.lines.append(l)
    def text(self): return '\n'.join(self.lines) + '\n'
def kernel_desc(name, vgpr, sgpr, accum, wgy=False):
    s = f""".amdhsa_kernel {name}
  .amdhsa_next_free_vgpr {vgpr}
  .amdhsa_next_free_sgpr {sgpr}
  .amdhsa_accum_offset {accum}
  .amdhsa_group_segment_fixed_size 0
  .amdhsa_kernarg_size 136
  .amdhsa_user_sgpr_count 2
  .amdhsa_user_sgpr_kernarg_segment_ptr 1
  .amdhsa_system_sgpr_workgroup_id_x 1
"""
    s += "  .amdhsa_float_denorm_mode_32 3\n"
    s += ".end_amdhsa_kernel\n"
    return s
def build(kernels, launches):
    out = HEADER_COMMON
    for (n, g, b, l) in launches:
        out += f"; @launch kernel={n} grid=({g[0]},{g[1]},{g[2]}) block=({b[0]},{b[1]},{b[2]}) lds={l}\n"
    out += '.amdgcn_target "amdgcn-amd-amdhsa--gfx950"\n.text\n'
    for (n, body, v, s, a) in kernels:
        out += f".globl {n}\n.p2align 8\n.type {n},@function\n{n}:\n{body}\n"
    out += '.section .rodata,"a"\n'
    for (n, body, v, s, a) in kernels:
        out += ".p2align 6\n" + kernel_desc(n, v, s, a)
    return out
```

```python
import sys
from asmlib import *
XN=0; W1T=0x280000; W2T=0x460000; U=0x640000; H1=0x1040000; H=0x1640000
def srd(a, d, lo, nbytes):
    a(f"  s_mov_b32 s{d}, s{lo}\n  s_and_b32 s{d+1}, s{lo+1}, 0xffff\n  s_mov_b32 s{d+2}, {nbytes}\n  s_mov_b32 s{d+3}, 0x20000")
def srd_off(a, d, lo, off, nbytes):
    a(f"  s_add_u32 s{d}, s{lo}, {off}\n  s_addc_u32 s{d+1}, s{lo+1}, 0\n  s_and_b32 s{d+1}, s{d+1}, 0xffff\n  s_mov_b32 s{d+2}, {nbytes}\n  s_mov_b32 s{d+3}, 0x20000")
def wave_reduce(a, v):
    for ctl in ['row_shr:1','row_shr:2','row_shr:4','row_shr:8']:
        a(f"  s_nop 1\n  v_add_f32_dpp v{v}, v{v}, v{v} {ctl} row_mask:0xf bank_mask:0xf")
    a(f"  s_nop 1\n  v_add_f32_dpp v{v}, v{v}, v{v} row_bcast:15 row_mask:0xa bank_mask:0xf")
    a(f"  s_nop 1\n  v_add_f32_dpp v{v}, v{v}, v{v} row_bcast:31 row_mask:0xc bank_mask:0xf")
def bfround(a, v):
    a(f"  v_cvt_pk_bf16_f32 v{v}, v{v}, v{v}\n  v_lshlrev_b32 v{v}, 16, v{v}")
def kA():
    a = Asm()
    a("""
  s_load_dwordx2 s[4:5], s[0:1], 0
  s_load_dwordx2 s[6:7], s[0:1], 128
  s_load_dwordx2 s[28:29], s[0:1], 80
  s_load_dwordx2 s[30:31], s[0:1], 96
  s_waitcnt lgkmcnt(0)
""")
    srd(a, 8, 4, 2621440)
    srd_off(a, 12, 6, XN, 2621440)
    a("""
  s_cmp_ge_u32 s2, 512
  s_cbranch_scc1 LA_tr
  v_lshrrev_b32 v1, 6, v0
  v_and_b32 v2, 63, v0
  s_lshl_b32 s3, s2, 2
  v_add_u32 v1, s3, v1        ; row
  v_mul_u32_u24 v1, 1280, v1
  v_lshl_add_u32 v1, v2, 2, v1
""")
    for j in range(5):
        a(f"  buffer_load_dword v{10+j}, v1, s[8:11], 0 offen offset:{j*256}")
    a("  s_waitcnt vmcnt(0)")
    for j in range(5):
        a(f"  v_lshlrev_b32 v{20+2*j}, 16, v{10+j}\n  v_and_b32 v{21+2*j}, 0xffff0000, v{10+j}")
    a("  v_mov_b32 v3, 0")
    for j in range(10): a(f"  v_add_f32 v3, v3, v{20+j}")
    wave_reduce(a, 3)
    a("""  s_nop 1
  v_readlane_b32 s16, v3, 63
  s_nop 1
  v_mov_b32 v4, 0x3acccccd     ; 1/640
  v_mul_f32 v4, s16, v4        ; mean
  v_mov_b32 v3, 0""")
    for j in range(10):
        a(f"  v_sub_f32 v5, v{20+j}, v4\n  v_fmac_f32 v3, v5, v5")
    wave_reduce(a, 3)
    a("""  s_nop 1
  v_readlane_b32 s16, v3, 63
  s_nop 1
  v_mov_b32 v6, 0x3acccccd
  v_mul_f32 v6, s16, v6        ; var""")
    bfround(a, 6)
    a("  v_add_f32 v6, 0x3727c5ac, v6   ; +1e-5")
    bfround(a, 6)
    a("  v_sqrt_f32 v6, v6\n  s_nop 0")
    bfround(a, 6)
    a("  v_rcp_f32 v6, v6\n  s_nop 0")
    bfround(a, 4)
    for j in range(10):
        a(f"  v_sub_f32 v{20+j}, v{20+j}, v4")
        bfround(a, 20+j)
        a(f"  v_mul_f32 v{20+j}, v{20+j}, v6")
    for j in range(5):
        a(f"  v_cvt_pk_bf16_f32 v{10+j}, v{20+2*j}, v{21+2*j}")
        a(f"  buffer_store_dword v{10+j}, v1, s[12:15], 0 offen offset:{j*256}")
    a("  s_endpgm\nLA_tr:")
    a("""
  s_sub_u32 s3, s2, 512
  s_cmp_ge_u32 s3, 7680
  s_cbranch_scc1 LA_end
  s_cmp_ge_u32 s3, 3840
  s_cbranch_scc1 LA_w2
""")
    srd(a, 16, 28, 1966080); srd_off(a, 20, 6, W1T, 1966080)
    a(f"""
  s_lshl_b32 s3, s3, 8
  v_add_u32 v1, s3, v0          ; i
  s_mov_b32 s24, {(2**32+639)//640}
  v_mul_hi_u32 v2, v1, s24      ; n
  v_mul_u32_u24 v3, 640, v2
  v_sub_u32 v3, v1, v3          ; k
  v_mul_u32_u24 v3, 1536, v3
  v_add_u32 v3, v3, v2
  v_lshlrev_b32 v3, 1, v3
  buffer_load_ushort v4, v3, s[16:19], 0 offen
  v_lshlrev_b32 v1, 1, v1
  s_waitcnt vmcnt(0)
  buffer_store_short v4, v1, s[20:23], 0 offen
  s_endpgm
LA_w2:
""")
    srd(a, 16, 30, 1966080); srd_off(a, 20, 6, W2T, 1966080)
    a(f"""
  s_sub_u32 s3, s3, 3840
  s_lshl_b32 s3, s3, 8
  v_add_u32 v1, s3, v0          ; i
  s_mov_b32 s24, {(2**32+1535)//1536}
  v_mul_hi_u32 v2, v1, s24      ; n
  v_mul_u32_u24 v3, 1536, v2
  v_sub_u32 v3, v1, v3          ; k
  v_mul_u32_u24 v3, 640, v3
  v_add_u32 v3, v3, v2
  v_lshlrev_b32 v3, 1, v3
  buffer_load_ushort v4, v3, s[16:19], 0 offen
  v_lshlrev_b32 v1, 1, v1
  s_waitcnt vmcnt(0)
  buffer_store_short v4, v1, s[20:23], 0 offen
LA_end:
  s_endpgm
""")
    for i in range(0, 983040, 997):
        assert (i*((2**32+639)//640))>>32 == i//640 and (i*((2**32+1535)//1536))>>32 == i//1536
    return a.text()
def gemm_loop(a, lbl, ksteps, va, vb, sa, sb, acc):
    a(f"  s_mov_b32 s40, {ksteps}\n{lbl}:")
    a(f"  buffer_load_dwordx4 v[40:43], v{va}, s[{sa}:{sa+3}], 0 offen")
    a(f"  buffer_load_dwordx4 v[44:47], v{vb}, s[{sb}:{sb+3}], 0 offen")
    a(f"  v_add_u32 v{va}, 32, v{va}\n  v_add_u32 v{vb}, 32, v{vb}")
    a(f"  s_waitcnt vmcnt(0)")
    a(f"  v_mfma_f32_32x32x16_bf16 v[{acc}:{acc+15}], v[40:43], v[44:47], v[{acc}:{acc+15}]")
    a(f"  s_sub_u32 s40, s40, 1\n  s_cmp_lg_u32 s40, 0\n  s_cbranch_scc1 {lbl}\n  s_nop 15\n  s_nop 3")
def kB():
    a = Asm()
    a("""
  s_cmp_ge_u32 s2, 1408
  s_cbranch_scc1 LB_end
  s_load_dwordx2 s[4:5], s[0:1], 24
  s_load_dwordx2 s[6:7], s[0:1], 32
  s_load_dwordx2 s[28:29], s[0:1], 128
  s_load_dwordx2 s[30:31], s[0:1], 88
  v_lshrrev_b32 v1, 6, v0
  s_nop 0
  v_readfirstlane_b32 s3, v1
  s_lshl_b32 s33, s2, 2
  s_add_u32 s33, s33, s3
  s_and_b32 s34, s33, 63
  s_lshr_b32 s35, s33, 6
  v_and_b32 v2, 31, v0         ; l&31
  v_bfe_u32 v3, v0, 5, 1       ; l>>5
  s_waitcnt lgkmcnt(0)
""")
    srd_off(a, 8, 28, XN, 2621440)
    a("  s_cmp_lt_u32 s35, 20\n  s_cbranch_scc0 LB_n1")
    srd(a, 12, 4, 819200); a("  s_mov_b32 s36, s35\n  s_branch LB_go\nLB_n1:\n  s_cmp_lt_u32 s35, 40\n  s_cbranch_scc0 LB_n2")
    srd(a, 12, 6, 819200); a("  s_sub_u32 s36, s35, 20\n  s_branch LB_go\nLB_n2:")
    srd_off(a, 12, 28, W1T, 1966080); a("  s_sub_u32 s36, s35, 40\nLB_go:")
    a("""
  s_lshl_b32 s37, s34, 5
  v_add_u32 v4, s37, v2
  v_mul_u32_u24 v4, 1280, v4
  v_lshl_add_u32 v4, v3, 4, v4     ; A voffset
  s_lshl_b32 s38, s36, 5
  v_add_u32 v5, s38, v2
  v_mul_u32_u24 v5, 1280, v5
  v_lshl_add_u32 v5, v3, 4, v5     ; B voffset
""")
    for r in range(16): a(f"  v_mov_b32 v{16+r}, 0")
    gemm_loop(a, 'LB_loop', 40, 4, 5, 8, 12, 16)
    a("""
  v_lshlrev_b32 v6, 2, v3
  v_add_u32 v6, s37, v6
  s_cmp_lt_u32 s35, 40
  s_cbranch_scc0 LB_ffn
""")
    srd_off(a, 16, 28, U, 0xA00000)
    a("""
  s_lshl_b32 s39, s35, 5
  v_add_u32 v7, s39, v2
  v_mul_u32_u24 v8, 1280, v6
  v_add_u32 v8, v8, v7
  v_lshlrev_b32 v8, 2, v8
""")
    for r in range(16):
        ro = (r//4)*8 + r%4
        a(f"  v_add_u32 v9, {ro*5120}, v8\n  buffer_store_dword v{16+r}, v9, s[16:19], 0 offen")
    a("  s_endpgm\nLB_ffn:")
    srd_off(a, 16, 28, H1, 0x600000)
    srd(a, 20, 30, 3072)
    a("""
  v_add_u32 v7, s38, v2
  v_lshlrev_b32 v10, 1, v7
  buffer_load_ushort v11, v10, s[20:23], 0 offen
  v_mul_u32_u24 v8, 1536, v6
  v_add_u32 v8, v8, v7
  v_lshlrev_b32 v8, 1, v8
  s_waitcnt vmcnt(0)
  v_lshlrev_b32 v11, 16, v11
""")
    for r in range(16):
        ro = (r//4)*8 + r%4
        v = 16+r
        bfround(a, v)
        a(f"  v_add_f32 v{v}, v{v}, v11")
        bfround(a, v)
        a(f"  v_max_f32 v{v}, 0, v{v}\n  v_mul_f32 v{v}, v{v}, v{v}\n  v_cvt_pk_bf16_f32 v{v}, v{v}, v{v}")
        a(f"  v_add_u32 v9, {ro*3072}, v8\n  buffer_store_short v{v}, v9, s[16:19], 0 offen")
    a("LB_end:\n  s_endpgm")
    return a.text()
def kC():
    a = Asm()
    a("""
  s_cmp_ge_u32 s2, 10
  s_cbranch_scc1 LC_end
  s_load_dwordx2 s[4:5], s[0:1], 8
  s_load_dwordx2 s[6:7], s[0:1], 16
  s_load_dwordx2 s[28:29], s[0:1], 128
  s_load_dwordx2 s[30:31], s[0:1], 56
  s_waitcnt lgkmcnt(0)
""")
    srd(a, 8, 4, 1280); srd(a, 12, 6, 1280); srd(a, 16, 30, 1280)
    srd_off(a, 20, 28, U, 0xA00000); srd_off(a, 24, 28, H, 0x500000)
    a("""
  s_lshl_b32 s3, s2, 6
  v_add_u32 v1, s3, v0         ; p
  v_lshlrev_b32 v2, 1, v1
  buffer_load_ushort v3, v2, s[8:11], 0 offen
  buffer_load_ushort v4, v2, s[12:15], 0 offen
  buffer_load_ushort v5, v2, s[16:19], 0 offen
  s_waitcnt vmcnt(0)
  v_lshlrev_b32 v3, 16, v3     ; lre
  v_lshlrev_b32 v4, 16, v4     ; lim
  v_lshlrev_b32 v5, 16, v5     ; log_dt
  v_mul_f32 v5, 0x3fb8aa3b, v5
  v_exp_f32 v5, v5
  s_nop 0
""")
    bfround(a, 5)
    a("""
  v_mul_f32 v6, v5, v3          ; dt*re
  v_mul_f32 v7, v5, v4          ; dt*im
  v_mul_f32 v6, 0x3fb8aa3b, v6
  v_exp_f32 v6, v6              ; |Lb|
  v_mul_f32 v7, 0.15915494, v7
  v_sin_f32 v8, v7
  v_cos_f32 v9, v7
  s_nop 0
  v_mul_f32 v10, v6, v9         ; Lr
  v_mul_f32 v11, v6, v8         ; Li
  v_subrev_f32 v12, 1.0, v10
  v_mul_f32 v13, v3, v3
  v_fmac_f32 v13, v4, v4        ; den
  v_rcp_f32 v13, v13
  v_mul_f32 v14, v12, v3
  v_fmac_f32 v14, v11, v4       ; ac+bd
  v_mul_f32 v15, v11, v3
  v_fma_f32 v15, -v12, v4, v15  ; bc-ad
  v_mul_f32 v14, v14, v13       ; cr
  v_mul_f32 v15, v15, v13       ; ci
  v_mov_b32 v16, 0              ; hr
  v_mov_b32 v17, 0              ; hi
  v_lshlrev_b32 v18, 2, v1      ; U off
  v_lshlrev_b32 v19, 1, v1      ; H off
  s_mov_b32 s40, 256
LC_loop:
""")
    for j in range(8):
        a(f"  buffer_load_dword v{32+2*j}, v18, s[20:23], 0 offen\n  buffer_load_dword v{33+2*j}, v18, s[20:23], 0 offen offset:2560\n  v_add_u32 v18, 5120, v18")
    a("  s_waitcnt vmcnt(0)")
    for j in range(8):
        ur, ui = 32+2*j, 33+2*j
        a(f"""  v_mul_f32 v20, v14, v{ur}
  v_fma_f32 v20, -v15, v{ui}, v20     ; Bu_r
  v_mul_f32 v21, v14, v{ui}
  v_fmac_f32 v21, v15, v{ur}          ; Bu_i
  v_fmac_f32 v20, v10, v16
  v_fma_f32 v20, -v11, v17, v20
  v_fmac_f32 v21, v10, v17
  v_fmac_f32 v21, v11, v16
  v_mov_b32 v16, v20
  v_mov_b32 v17, v21
  v_cvt_pk_bf16_f32 v22, v16, v16
  v_sub_f32 v23, 0, v17
  v_cvt_pk_bf16_f32 v23, v23, v23
  buffer_store_short v22, v19, s[24:27], 0 offen
  buffer_store_short v23, v19, s[24:27], 0 offen offset:1280
  v_add_u32 v19, 2560, v19""")
    a("  s_sub_u32 s40, s40, 1\n  s_cmp_lg_u32 s40, 0\n  s_cbranch_scc1 LC_loop\nLC_end:\n  s_endpgm")
    return a.text()
def kD(name_unused=None):
    a = Asm()
    a("""
  s_cmp_ge_u32 s2, 320
  s_cbranch_scc1 LD_end
  s_load_dwordx2 s[4:5], s[0:1], 40
  s_load_dwordx2 s[6:7], s[0:1], 48
  s_load_dwordx2 s[28:29], s[0:1], 128
  s_load_dwordx2 s[30:31], s[0:1], 0
  s_load_dwordx2 s[44:45], s[0:1], 64
  s_load_dwordx2 s[46:47], s[0:1], 104
  s_load_dwordx2 s[48:49], s[0:1], 112
  v_lshrrev_b32 v1, 6, v0
  s_nop 0
  v_readfirstlane_b32 s3, v1
  s_lshl_b32 s33, s2, 2
  s_add_u32 s33, s33, s3
  s_and_b32 s34, s33, 63
  s_lshr_b32 s35, s33, 6
  v_and_b32 v2, 31, v0
  v_bfe_u32 v3, v0, 5, 1
  s_waitcnt lgkmcnt(0)
""")
    srd_off(a, 8, 28, H, 0x500000); srd(a, 12, 4, 819200); srd(a, 16, 6, 819200)
    srd_off(a, 20, 28, H1, 0x600000); srd_off(a, 24, 28, W2T, 1966080)
    a("""
  s_lshl_b32 s37, s34, 5
  s_lshl_b32 s38, s35, 5
  v_add_u32 v6, s37, v2            ; row
  v_add_u32 v7, s38, v2            ; col
  v_mul_u32_u24 v4, 2560, v6
  v_lshl_add_u32 v4, v3, 4, v4     ; H off
  v_mul_u32_u24 v5, 1280, v7
  v_lshl_add_u32 v5, v3, 4, v5     ; C off
""")
    for r in range(32): a(f"  v_mov_b32 v{64+r}, 0")
    gemm_loop(a, 'LD_l1', 40, 4, 5, 8, 12, 64)
    a("  v_add_u32 v5, -1280, v5".replace('-1280', str((-1280) & 0xffffffff)))
    gemm_loop(a, 'LD_l2', 40, 4, 5, 8, 16, 64)
    a("""
  v_mul_u32_u24 v4, 3072, v6
  v_lshl_add_u32 v4, v3, 4, v4
  v_mul_u32_u24 v5, 3072, v7
  v_lshl_add_u32 v5, v3, 4, v5
""")
    gemm_loop(a, 'LD_l3', 96, 4, 5, 20, 24, 80)
    srd(a, 8, 30, 2621440); srd_off(a, 12, 28, XN, 2621440); srd(a, 16, 44, 1280); srd(a, 20, 46, 1280); srd(a, 24, 48, 5242880)
    a("""
  v_lshlrev_b32 v10, 1, v7
  buffer_load_ushort v11, v10, s[16:19], 0 offen   ; Dskip
  buffer_load_ushort v12, v10, s[20:23], 0 offen   ; b2
  v_lshlrev_b32 v6, 2, v3
  v_add_u32 v6, s37, v6
  v_mul_u32_u24 v8, 640, v6
  v_add_u32 v8, v8, v7
  s_waitcnt vmcnt(0)
  v_lshlrev_b32 v11, 16, v11
  v_lshlrev_b32 v12, 16, v12
""")
    for r in range(16):
        ro = (r//4)*8 + r%4
        y, o = 64+r, 80+r
        a(f"""  v_add_u32 v9, {ro*640}, v8
  v_lshlrev_b32 v13, 1, v9
  buffer_load_ushort v14, v13, s[8:11], 0 offen
  buffer_load_ushort v15, v13, s[12:15], 0 offen
  s_waitcnt vmcnt(0)
  v_lshlrev_b32 v14, 16, v14
  v_lshlrev_b32 v15, 16, v15
  v_mul_f32 v15, v15, v11""")
        bfround(a, 15)
        a(f"  v_fma_f32 v{y}, 2.0, v{y}, v15")
        bfround(a, o)
        a(f"  v_add_f32 v{o}, v{o}, v12")
        bfround(a, o)
        a(f"""  v_mul_f32 v32, 0xbfb8aa3b, v{o}
  v_exp_f32 v32, v32
  s_nop 0
  v_add_f32 v32, 1.0, v32
  v_rcp_f32 v32, v32
  s_nop 0
  v_mul_f32 v32, v{o}, v32""")
        bfround(a, 32)
        a(f"  v_fma_f32 v32, v{y}, v32, v14\n  v_lshlrev_b32 v9, 2, v9\n  buffer_store_dword v32, v9, s[24:27], 0 offen")
    a("LD_end:\n  s_endpgm")
    return a.text()
def trivial(lbl):
    return "  s_endpgm\n"
if __name__ == '__main__':
    ks = [('kA_kernel', kA(), 64, 64, 64), ('kB_kernel', kB(), 64, 64, 64), ('kC_kernel', kC(), 64, 64, 64), (KN+'_kernel', kD(), 96, 64, 96), ('kT_kernel', trivial('t'), 8, 16, 8)]
    L = [('kA_kernel',(8192,1,1),(256,1,1),0), ('kB_kernel',(1408,1,1),(256,1,1),0), ('kC_kernel',(10,1,1),(64,1,1),0), (KN+'_kernel',(320,1,1),(256,1,1),0)]
    open('base0.s','w').write(build(ks[:4], L))
    T = ('kT_kernel',(256,1,1),(256,1,1),0)
    open('base_t1.s','w').write(build(ks, L+[T]))
    open('base_t4.s','w').write(build(ks, L+[T]*4))
    open('base_t16.s','w').write(build(ks, L+[T]*16))
    open('base_f1.s','w').write(build(ks, [T]+L))
    open('base_f4.s','w').write(build(ks, [T]*4+L))
    open('base_f16.s','w').write(build(ks, [T]*16+L))
```

```python
import sys, os
from asmlib import *
import base_gen as B
def probe(koff, nbytes, total_kb=800, depth=24, mode='same', nwaves=4, lds_ring_kb=32, slot=0):
    a = Asm()
    iters = total_kb // nwaves
    a(f"""
  s_cmp_ge_u32 s2, 256
  s_cbranch_scc1 LP_end
  s_load_dwordx2 s[4:5], s[0:1], {koff}
  s_load_dwordx2 s[6:7], s[0:1], 128
  s_memrealtime s[20:21]
  s_memtime s[22:23]
  s_waitcnt lgkmcnt(0)
  s_mov_b32 s8, s4
  s_and_b32 s9, s5, 0xffff
  s_mov_b32 s10, {nbytes}
  s_mov_b32 s11, 0x20000
  s_mov_b32 s32, s6
  s_and_b32 s33, s7, 0xffff
  s_mov_b32 s34, 0x10000000
  s_mov_b32 s35, 0x20000
  v_lshrrev_b32 v1, 6, v0
  s_nop 0
  v_readfirstlane_b32 s12, v1
  v_and_b32 v2, 63, v0
  v_lshlrev_b32 v2, 4, v2          ; lane*16
""")
    if mode == 'same': a("  s_mov_b32 s13, 0")
    elif mode == 'rot':
        a(f"  s_lshr_b32 s13, s2, 3\n  s_and_b32 s13, s13, 31\n  s_mul_i32 s13, s13, {total_kb*1024//32}")
    a(f"""
  s_lshl_b32 s14, s12, 10
  s_add_u32 s13, s13, s14
  s_mul_i32 s15, s12, {lds_ring_kb*1024}
  s_mov_b32 s16, 0
  s_mov_b32 s17, {iters}
LP_loop:
  s_add_u32 s18, s15, s16
  s_mov_b32 m0, s18
  s_add_u32 s16, s16, 1024
  s_and_b32 s16, s16, {lds_ring_kb*1024-1}
  buffer_load_dwordx4 v2, s[8:11], s13 offen lds
  s_add_u32 s13, s13, {nwaves*1024}
  s_cmp_ge_u32 s13, {total_kb*1024}
  s_cbranch_scc0 LP_nw
  s_sub_u32 s13, s13, {total_kb*1024}
LP_nw:
  s_waitcnt vmcnt({depth})
  s_sub_u32 s17, s17, 1
  s_cmp_lg_u32 s17, 0
  s_cbranch_scc1 LP_loop
  s_waitcnt vmcnt(0)
  s_barrier
  s_memrealtime s[24:25]
  s_memtime s[26:27]
  s_waitcnt lgkmcnt(0)
  s_cmp_lg_u32 s12, 0
  s_cbranch_scc1 LP_end
  s_getreg_b32 s28, hwreg(HW_REG_XCC_ID)
  v_mov_b32 v4, s20
  v_mov_b32 v5, s24
  v_mov_b32 v6, s22
  v_mov_b32 v7, s26
  s_lshl_b32 s3, s2, 5
  s_add_u32 s3, s3, 0xF000000
  v_mov_b32 v3, s3
  v_cmp_eq_u32 vcc, 0, v0
  s_and_saveexec_b64 s[30:31], vcc
  buffer_store_dwordx4 v[4:7], v3, s[32:35], 0 offen
  v_mov_b32 v4, s28
  buffer_store_dword v4, v3, s[32:35], 0 offen offset:16
LP_end:
  s_endpgm
""")
    return a.text()
ks = [('kA_kernel', B.kA(), 64, 64, 64), ('kB_kernel', B.kB(), 64, 64, 64), ('kC_kernel', B.kC(), 64, 64, 64), (KN+'_kernel', B.kD(), 96, 64, 96)]
L = [('kA_kernel',(8192,1,1),(256,1,1),0), ('kB_kernel',(1408,1,1),(256,1,1),0), ('kC_kernel',(10,1,1),(64,1,1),0), (KN+'_kernel',(320,1,1),(256,1,1),0)]
os.makedirs('pr', exist_ok=True)
P = ('kP_kernel',(256,1,1),(256,1,1),131072)
for name, args in [('w1_same', dict(koff=80, nbytes=1966080)), ('w1_rot', dict(koff=80, nbytes=1966080, mode='rot')),
                   ('ws_same', dict(koff=128, nbytes=0x10000000)), ('bx_same', dict(koff=72, nbytes=2621440)),
                   ('w1_rot1600', dict(koff=80, nbytes=1966080, mode='rot', total_kb=1600))]:
    p = probe(**args)
    open(f'pr/full_{name}.s','w').write(build([('kP_kernel', p, 16, 40, 16)]+ks, [P]+L))
    open(f'pr/only_{name}.s','w').write(build([('kP_kernel', p, 16, 40, 16)], [P]))
```

```python
KN = 'recurrent_scan__ssm_conv_s5__dense_activation_squared_relu__prompt'
HEADER_COMMON = """; Kernarg layout (136 bytes, ptrs only, base s[0:1]):
"""
class Asm:
    def __init__(self):
        self.lines = []
    def __call__(self, s=''):
        for l in s.split('\n'):
            self.lines.append(l)
    def text(self): return '\n'.join(self.lines) + '\n'
def kernel_desc(name, vgpr, sgpr, accum, wgy=False):
    s = f""".amdhsa_kernel {name}
  .amdhsa_next_free_vgpr {vgpr}
  .amdhsa_next_free_sgpr {sgpr}
  .amdhsa_accum_offset {accum}
  .amdhsa_group_segment_fixed_size 0
  .amdhsa_kernarg_size 136
  .amdhsa_user_sgpr_count 2
  .amdhsa_user_sgpr_kernarg_segment_ptr 1
  .amdhsa_system_sgpr_workgroup_id_x 1
"""
    s += "  .amdhsa_float_denorm_mode_32 3\n"
    s += ".end_amdhsa_kernel\n"
    return s
def build(kernels, launches):
    import re
    for (n, body, v, s_, a_) in kernels:
        for ln in body.split('\n'):
            m = re.search(r'offset:(\d+)', ln)
            if m:
                o = int(m.group(1))
                if 'buffer_' in ln and o > 4095: raise RuntimeError('buffer offset too large: '+ln)
                if 'ds_' in ln and o > 65535: raise RuntimeError('ds offset too large: '+ln)
            for m in re.finditer(r'\bv\[?(\d+)(?::(\d+))?', ln.split(';')[0]):
                hi = int(m.group(2) or m.group(1))
                if hi >= v: raise RuntimeError(f'vgpr {hi} >= {v}: '+ln)
            for m in re.finditer(r'\bs\[?(\d+)(?::(\d+))?', ln.split(';')[0]):
                hi = int(m.group(2) or m.group(1))
                if hi >= s_: raise RuntimeError(f'sgpr {hi} >= {s_}: '+ln)
    out = HEADER_COMMON
    for (n, g, b, l) in launches:
        out += f"; @launch kernel={n} grid=({g[0]},{g[1]},{g[2]}) block=({b[0]},{b[1]},{b[2]}) lds={l}\n"
    out += '.amdgcn_target "amdgcn-amd-amdhsa--gfx950"\n.text\n'
    for (n, body, v, s, a) in kernels:
        out += f".globl {n}\n.p2align 8\n.type {n},@function\n{n}:\n{body}\n"
    out += '.section .rodata,"a"\n'
    for (n, body, v, s, a) in kernels:
        out += ".p2align 6\n" + kernel_desc(n, v, s, a)
    return out
```

```python
from asmlib import *
from layout import *
def srd(a, d, lo, nbytes):
    a(f"  s_mov_b32 s{d}, s{lo}\n  s_and_b32 s{d+1}, s{lo+1}, 0xffff\n  s_mov_b32 s{d+2}, {nbytes}\n  s_mov_b32 s{d+3}, 0x20000")
def srd_off(a, d, lo, off, nbytes):
    a(f"  s_add_u32 s{d}, s{lo}, {off}\n  s_addc_u32 s{d+1}, s{lo+1}, 0\n  s_and_b32 s{d+1}, s{d+1}, 0xffff\n  s_mov_b32 s{d+2}, {nbytes}\n  s_mov_b32 s{d+3}, 0x20000")
def vr(b, n=1): return f"v{b}" if n == 1 else f"v[{b}:{b+n-1}]"
def sr(b, n=1): return f"s{b}" if n == 1 else f"s[{b}:{b+n-1}]"
def bfround(a, v, d=None):
    d = v if d is None else d
    a(f"  v_cvt_pk_bf16_f32 v{d}, v{v}, v{v}\n  v_lshlrev_b32 v{d}, 16, v{d}")
def stamp(a, sreg, on):
    if on: a(f"  s_memrealtime s[{sreg}:{sreg+1}]")
def stamp_store(a, srdreg, wgreg, sregs, vtmp, on, slot_bytes=64, base=0):
    if not on: return
    a("  s_waitcnt lgkmcnt(0)")
    a(f"  s_mul_i32 s3, s{wgreg}, {slot_bytes}\n  v_mov_b32 v{vtmp}, s3")
    n = len(sregs)
    for i, s in enumerate(sregs):
        a(f"  v_mov_b32 v{vtmp+1}, s{s}")
        a(f"  buffer_store_dword v{vtmp+1}, v{vtmp}, s[{srdreg}:{srdreg+3}], 0 offen offset:{base+4*i}")
def pk(a, op, d, *srcs):
    sel, selh, nl, nh, rs = [], [], [], [], []
    for s in srcs:
        if isinstance(s, int): s = (s, 'n', '')
        if len(s) == 2: s = (s[0], s[1], '')
        r, m, ng = s
        assert r % 2 == 0, (op, d, srcs)
        rs.append(f"v[{r}:{r+1}]")
        sel.append({'n':0,'l':0,'h':1,'s':1}[m]); selh.append({'n':1,'l':0,'h':1,'s':0}[m])
        nl.append(1 if ng in ('b','l') else 0); nh.append(1 if ng in ('b','h') else 0)
    assert d % 2 == 0
    f = lambda x: '[' + ','.join(map(str, x)) + ']'
    t = f"  v_pk_{op}_f32 v[{d}:{d+1}], " + ", ".join(rs)
    if any(sel): t += f" op_sel:{f(sel)}"
    if not all(selh): t += f" op_sel_hi:{f(selh)}"
    if any(nl): t += f" neg_lo:{f(nl)}"
    if any(nh): t += f" neg_hi:{f(nh)}"
    a(t)
def interleave(a, mains, fillers, start=0, per=1):
    fl = list(fillers)
    for i, m in enumerate(mains):
        a(m)
        if i >= start:
            for _ in range(per):
                if fl: a(fl.pop(0))
    for f in fl: a(f)
```

```python
from gl import *
RING = 40960
TB = 122880
FL = TB; RSA = TB+256; QA = RSA+512; RSF = QA+512; QF = RSF+512
CSL = TB+2304; LAM = TB+2688; LST = TB+5760; CS1 = TB+8832; B1T = TB+9344
EL = TB+9856; HIN = TB+15616; IMG = TB+16384
F_TAB, F_HIN, F_E, F_TAG = FL, FL+4, FL+8, FL+32
STG = 163840 - 4096
LDS_BYTES = 163840
WFL_OFF = 0x80000
def poll_lds(a, lbl, addr_v, tmp, off, sreg=60):
    a(f"""{lbl}:
  ds_read_b32 v{tmp}, v{addr_v} offset:{off}
  s_waitcnt lgkmcnt(0)
  v_readfirstlane_b32 s{sreg}, v{tmp}
  s_cmp_eq_u32 s{sreg}, 0
  s_cbranch_scc1 {lbl}""")
def prologue(a, P):
    a(f"""
  s_cmp_ge_u32 s2, 256
  s_cbranch_scc1 K1_end
  s_load_dwordx2 s[4:5], s[0:1], 0
  s_load_dwordx2 s[6:7], s[0:1], 24
  s_load_dwordx2 s[8:9], s[0:1], 32
  s_load_dwordx2 s[10:11], s[0:1], 80
  s_load_dwordx2 s[12:13], s[0:1], 128
  s_load_dwordx2 s[14:15], s[0:1], 88
  s_load_dwordx2 s[16:17], s[0:1], 8
  s_load_dwordx2 s[18:19], s[0:1], 16
  s_load_dwordx2 s[20:21], s[0:1], 56
  s_load_dwordx2 s[22:23], s[0:1], 40
  s_load_dwordx2 s[24:25], s[0:1], 48
  s_load_dwordx2 s[26:27], s[0:1], 96
""")
    stamp(a, 80, P.get('stamps'))
    a(f"""
  v_lshrrev_b32 v1, 6, v0
  v_and_b32 v0, 63, v0                      ; lane
  v_readfirstlane_b32 s28, v1               ; wave
  s_and_b32 s60, s2, 7                      ; x
  s_lshr_b32 s61, s2, 3                     ; slot
  s_lshr_b32 s62, s61, 3
  s_lshl_b32 s62, s62, 2
  s_lshr_b32 s63, s60, 1
  s_add_u32 s29, s62, s63                   ; c
  s_and_b32 s62, s60, 1
  s_lshl_b32 s62, s62, 3
  s_and_b32 s63, s61, 7
  s_add_u32 s30, s62, s63                   ; j
""")
    if P.get('map8'):
        a("""  s_and_b32 s62, s60, 1
  s_lshl_b32 s62, s62, 3
  s_lshr_b32 s63, s61, 2
  s_add_u32 s29, s62, s63                   ; c = 8*(x&1) + (slot>>2)
  s_lshr_b32 s62, s60, 1
  s_lshl_b32 s62, s62, 2
  s_and_b32 s63, s61, 3
  s_add_u32 s30, s62, s63                   ; j = 4*(x>>1) + (slot&3)""")
    a(f"""
  s_and_b32 s31, s30, 1                     ; type (1 = Y)
  s_lshr_b32 s35, s30, 1                    ; m
  s_mul_i32 s32, s35, 5
  s_mul_i32 s62, s31, 3
  s_add_u32 s32, s32, s62                   ; cu0
  s_mul_i32 s33, s35, 3
  s_add_u32 s33, s33, s31                   ; blk0
  s_and_b32 s62, s61, {3 if P.get('map8') else 7}
  s_mul_i32 s62, s62, {P.get('rot_a', 0)}
  s_lshr_b32 s63, s61, {2 if P.get('map8') else 3}
  s_mul_i32 s63, s63, {P.get('rot_b', 0)}
  s_add_u32 s62, s62, s63
  s_mul_i32 s63, s62, 6554
  s_lshr_b32 s63, s63, 16
  s_mul_i32 s63, s63, 10
  s_sub_u32 s34, s62, s63                   ; rot
  s_waitcnt lgkmcnt(0)
  s_cmp_lt_u32 s28, 4
  s_cbranch_scc1 K1_compute
  s_cmp_eq_u32 s28, 4
  s_cbranch_scc1 K1_ldx
  s_cmp_eq_u32 s28, 5
  s_cbranch_scc1 K1_ldb
  s_cmp_eq_u32 s28, 6
  s_cbranch_scc1 K1_ldw
  s_branch K1_sync
""")
class VM:
    def __init__(self): self.ops = []
    def add(self, tag, n=1): self.ops += [tag]*n
    def after(self, tag):
        last = max(i for i, t in enumerate(self.ops) if t == tag)
        return min(len(self.ops) - 1 - last, 63)
def loader_loop(a, name, N, issue, P, tail, pre=None, hooks=None):
    vm = VM()
    if pre: pre(vm)
    a(f"  s_mov_b32 s60, s34\n  s_mov_b32 s61, 0")
    def adv():
        a(f"""  s_add_u32 s60, s60, 1
  s_cmp_eq_u32 s60, 10
  s_cselect_b32 s60, 0, s60
  s_add_u32 s61, s61, {RING}
  s_cmp_eq_u32 s61, {3*RING}
  s_cselect_b32 s61, 0, s61""")
    def iss(s):
        issue(); vm.add(('st', s), N); adv()
    iss(0); iss(1)
    if P.get('pre0'):
        a("  s_barrier")
        if hooks:
            a(f"  s_waitcnt vmcnt({vm.after('prod')})")
            for s in sorted(h for h in hooks if h < 2): hooks[s](vm)
            hooks = {h: f for h, f in hooks.items() if h >= 2}
    for s in range(10):
        a(f"  s_waitcnt vmcnt({vm.after(('st', s))})\n  s_barrier")
        if s + 2 < 10: iss(s + 2)
        if hooks and s in hooks: hooks[s](vm)
        if hooks and s == 0 and 10 in hooks: hooks[10](vm)
    tail(vm)
DPP = 'row_mask:0xf bank_mask:0xf'
def red16(a, regs):
    for r in (8, 4, 2, 1):
        if len(regs) < 3: a("  s_nop 1")
        for v in regs: a(f"  v_add_f32_dpp v{v}, v{v}, v{v} row_ror:{r} {DPP}")
    a("  s_nop 0")
def xs_issue(a, srdx, wq, vm=None):
    a(f"""  v_lshrrev_b32 v20, 4, v0
  s_lshl_b32 s60, s29, 7
  s_lshl_b32 s61, s30, 3
  s_add_u32 s60, s60, s61
  s_add_u32 s60, s60, {4*wq}
  v_add_u32 v20, s60, v20                   ; row
  v_lshlrev_b32 v21, 4, v20
  v_add_u32 v21, {XS_OFF}, v21
  v_mul_u32_u24 v20, 1280, v20
  v_and_b32 v22, 15, v0
  v_lshl_add_u32 v20, v22, 4, v20""")
    for n in range(5): a(f"  buffer_load_dwordx4 v[{24+4*n}:{27+4*n}], v20, s[{srdx}:{srdx+3}], 0 offen offset:{n*256}")
    if vm: vm.add('prod', 5)
def xs_part1(a):
    U = 48
    for i in range(20): a(f"  v_lshlrev_b32 v{U+2*i}, 16, v{24+i}\n  v_and_b32 v{U+2*i+1}, 0xffff0000, v{24+i}")
    for k in range(4): a(f"  v_add_f32 v{88+k}, v{U+k}, v{U+4+k}")
    for i in range(2, 10):
        for k in range(4): a(f"  v_add_f32 v{88+k}, v{88+k}, v{U+4*i+k}")
    a("  v_add_f32 v88, v88, v89\n  v_add_f32 v90, v90, v91\n  v_add_f32 v88, v88, v90")
    red16(a, [88])
    a(f"  v_mul_f32 v92, {float(np.float32(1/640.))!r}, v88            ; mean")
def xs_part2(a, srdw, tagv, vm=None):
    U = 48
    for i in range(40): a(f"  v_sub_f32 v{U+i}, v{U+i}, v92")
    for k in range(4): a(f"  v_mul_f32 v{88+k}, v{U+k}, v{U+k}")
    for i in range(1, 10):
        for k in range(4): a(f"  v_fmac_f32 v{88+k}, v{U+4*i+k}, v{U+4*i+k}")
    a("  v_add_f32 v88, v88, v89\n  v_add_f32 v90, v90, v91\n  v_add_f32 v88, v88, v90")
    red16(a, [88])
    a(f"  v_mul_f32 v88, {float(np.float32(1/640.))!r}, v88            ; var")
    bfround(a, 92, 96)
    bfround(a, 88)
    a("  v_add_f32 v88, 0x3727c5ac, v88")
    bfround(a, 88)
    a("  v_sqrt_f32 v88, v88\n  s_nop 0")
    bfround(a, 88)
    a(f"""  v_rcp_f32 v98, v88
  v_mov_b32 v97, v{tagv}
  v_mov_b32 v99, v{tagv}
  s_mov_b32 exec_lo, 0x00010001
  s_mov_b32 exec_hi, 0x00010001
  buffer_store_dwordx4 v[96:99], v21, s[{srdw}:{srdw+3}], 0 offen sc1
  s_mov_b64 exec, -1""")
    if vm: vm.add('pst')
def get_tag(a, v):
    a(f"  v_mov_b32 v{v}, {F_TAG}\n  ds_read_b32 v{v}, v{v}\n  s_waitcnt lgkmcnt(0)")
def sum_bf16(a, src, n, acc):
    a(f"  v_lshlrev_b32 v{acc}, 16, v{src}\n  v_and_b32 v{acc+1}, 0xffff0000, v{src}")
    for i in range(1, n):
        a(f"  v_lshlrev_b32 v{acc+2}, 16, v{src+i}\n  v_and_b32 v{acc+3}, 0xffff0000, v{src+i}\n  v_add_f32 v{acc}, v{acc}, v{acc+2}\n  v_add_f32 v{acc+1}, v{acc+1}, v{acc+3}")
    a(f"  v_add_f32 v{acc}, v{acc}, v{acc+1}")
def div10(a, d, r, src):
    a(f"  s_mul_i32 s{d}, s{src}, 6554\n  s_lshr_b32 s{d}, s{d}, 16\n  s_mul_i32 s{r}, s{d}, 10\n  s_sub_u32 s{r}, s{src}, s{r}")
def dt_split(a, ct, nt, dt):
    a(f"  s_mul_i32 s{ct}, s{dt}, 13108\n  s_lshr_b32 s{ct}, s{ct}, 16\n  s_mul_i32 s{nt}, s{ct}, 5\n  s_sub_u32 s{nt}, s{dt}, s{nt}")
def wflag(a, vm, which):
    a(f"""  s_lshl_b32 s65, s2, 3
  s_add_u32 s65, s65, {WFL_OFF + 4*which}
  v_mov_b32 v18, s65
  s_mov_b64 exec, 1
  buffer_store_dword v23, v18, s[44:47], 0 offen sc1
  s_mov_b64 exec, -1""")
    vm.add('flag')
def relay_w2(a, P):
    srd(a, 48, 26, F*D*2)
    srd_off(a, 52, 12, WF_OFF, WF_BYTES)
    a(f"""  v_lshrrev_b32 v10, 3, v0
  v_mul_u32_u24 v10, 1280, v10
  v_and_b32 v11, 7, v0
  v_lshl_add_u32 v10, v11, 4, v10
  v_lshrrev_b32 v11, 4, v0                  ; g
  v_lshlrev_b32 v11, 2, v11
  v_bfe_u32 v12, v0, 2, 2
  v_add_u32 v11, v11, v12                   ; row = g*4 + (q>>2)
  v_lshlrev_b32 v11, 7, v11
  v_and_b32 v12, 3, v0
  v_lshl_add_u32 v11, v12, 3, v11
  v_add_u32 v11, {STG}, v11
  v_lshlrev_b32 v12, 4, v0                  ; lane*16
  s_add_u32 s67, s2, 256
  s_cmp_lt_u32 s2, 224
  s_cselect_b32 s67, s67, s2""")
    def dma(vm, treg):
        div10(a, 68, 69, treg)
        a(f"  s_mul_i32 s65, s68, {32*1280}\n  s_lshl_b32 s66, s69, 7\n  s_add_u32 s65, s65, s66")
        for n in range(4):
            a(f"  s_movk_i32 m0, {0}\n  s_mov_b32 m0, {STG + n*1024}\n  s_add_u32 s66, s65, {n*8*1280}\n  buffer_load_dwordx4 v10, s[48:51], s66 offen lds".replace("  s_movk_i32 m0, 0\n", ""))
        vm.add('rl', 4)
    def proc(vm):
        a(f"  s_waitcnt vmcnt({vm.after('rl')})")
        for u in range(4):
            a(f"  ds_read_b64_tr_b16 v[{100+4*u}:{101+4*u}], v11 offset:{u*32}\n  ds_read_b64_tr_b16 v[{102+4*u}:{103+4*u}], v11 offset:{u*32+2048}")
        for u in range(4):
            a(f"  s_lshl_b32 s70, s69, 2\n  s_add_u32 s70, s70, {u}")
            dt_split(a, 71, 72, 70)
            a(f"  s_mul_i32 s71, s71, 440\n  s_mul_i32 s73, s68, 5\n  s_add_u32 s71, s71, s73\n  s_add_u32 s71, s71, s72\n  s_lshl_b32 s71, s71, 10")
            a(f"  s_waitcnt lgkmcnt({6-2*u})\n  buffer_store_dwordx4 v[{100+4*u}:{103+4*u}], v12, s[52:55], s71 offen sc1")
        vm.add('rs', 4)
    def h0(vm): dma(vm, 2)
    def h2(vm): proc(vm); dma(vm, 67)
    def h4(vm): proc(vm)
    def h7(vm): wflag(a, vm, 0)
    return {10: h0, 2: h2, 4: h4, 7: h7}
def relay_c(a, P):
    srd(a, 48, 22, D*D*2); srd(a, 52, 24, D*D*2)
    srd_off(a, 56, 12, WF_OFF, WF_BYTES)
    a(f"""  v_and_b32 v10, 15, v0
  v_mul_u32_u24 v10, 1280, v10
  v_lshrrev_b32 v11, 4, v0
  v_lshl_add_u32 v10, v11, 3, v10           ; i*1280 + g*8
  v_lshlrev_b32 v12, 4, v0
  s_add_u32 s67, s2, 144
  s_cmp_ge_u32 s2, 112
  s_cselect_b32 s67, s67, s2""")
    def ld(vm, treg, R, so):
        div10(a, 68, 69, treg)
        a(f"  s_mul_i32 s65, s68, {16*1280}\n  s_lshl_b32 s66, s69, 7\n  s_add_u32 s65, s65, s66")
        for u in range(4):
            a(f"  buffer_load_dwordx2 v[{R+4*u}:{R+4*u+1}], v10, s[48:51], s65 offen offset:{u*32}\n  buffer_load_dwordx2 v[{R+4*u+2}:{R+4*u+3}], v10, s[52:55], s65 offen offset:{u*32}")
        vm.add(('rl', R), 8)
        dt_split(a, 71, 72, 68)
        a(f"  s_mul_i32 s71, s71, 440\n  s_mul_i32 s73, s69, 20\n  s_add_u32 s71, s71, s73\n  s_add_u32 s71, s71, s72\n  s_add_u32 s71, s71, 240\n  s_lshl_b32 s{so}, s71, 10")
    def st(vm, R, so):
        a(f"  s_waitcnt vmcnt({vm.after(('rl', R))})")
        for u in range(4):
            a(f"  s_add_u32 s65, s{so}, {u*5120}\n  buffer_store_dwordx4 v[{R+4*u}:{R+4*u+3}], v12, s[56:59], s65 offen sc1")
        vm.add('rs', 4)
    def h0(vm): ld(vm, 2, 100, 74); ld(vm, 67, 116, 75)
    def h2(vm): st(vm, 100, 74); st(vm, 116, 75)
    def h5(vm): wflag(a, vm, 1)
    return {10: h0, 2: h2, 5: h5}
def loaders(a, P):
    NT = P.get('nt_k1', '')
    a("K1_ldx:")
    srd(a, 36, 4, S*D*2)
    a(f"""
  v_lshrrev_b32 v1, 5, v0
  v_lshlrev_b32 v1, 4, v1                   ; (l>>5)*16
  v_bfe_u32 v2, v0, 3, 1
  v_lshl_add_u32 v1, v2, 3, v1              ; + ((l>>3)&1)*8
  v_bfe_u32 v2, v0, 4, 1
  v_add_u32 v1, v1, v2
  s_lshl_b32 s63, s29, 7
  v_add_u32 v1, s63, v1
  v_mul_u32_u24 v1, 1280, v1
  v_and_b32 v2, 7, v0
  v_lshrrev_b32 v3, 4, v0
  v_xor_b32 v2, v2, v3
  v_lshl_add_u32 v4, v2, 4, v1
  v_xor_b32 v2, 4, v2
  v_lshl_add_u32 v5, v2, 4, v1
""")
    def issue_x():
        a("  s_lshl_b32 s63, s60, 7")
        for n in range(16):
            row = (n>>3)*64 + (n&1)*32 + ((n>>1)&3)*2
            a(f"  s_add_u32 m0, s61, {n*1024}\n  s_add_u32 s64, s63, {row*1280}\n  buffer_load_dwordx4 v{4+(n&1)}, s[36:39], s64 offen {NT} lds")
    PROD = P.get('prod')
    tail = lambda vm: a("  s_branch K1_relay")
    if PROD:
        srd(a, 44, 12, 0x100000)
        def hx0(vm): get_tag(a, 23); xs_part1(a)
        def hx1(vm): xs_part2(a, 44, 23, vm)
        hk = {0: hx0, 1: hx1}
        if P.get('relay'): hk.update(relay_w2(a, P))
        loader_loop(a, 'K1_lx', 16, issue_x, P, tail, pre=lambda vm: xs_issue(a, 36, 0, vm), hooks=hk)
    else:
        loader_loop(a, 'K1_lx', 16, issue_x, P, tail)
    a("K1_ldb:")
    srd(a, 36, 6, D*D*2); srd(a, 40, 8, D*D*2)
    a(f"""
  v_lshrrev_b32 v1, 3, v0
  s_lshl_b32 s63, s32, 4
  v_add_u32 v1, s63, v1
  v_mul_u32_u24 v1, 1280, v1
  v_and_b32 v2, 7, v0
  v_lshrrev_b32 v3, 4, v0
  v_xor_b32 v2, v2, v3
  v_lshl_add_u32 v4, v2, 4, v1
  v_xor_b32 v2, 4, v2
  v_lshl_add_u32 v5, v2, 4, v1
""")
    def issue_b(nu):
        def f():
            a("  s_lshl_b32 s63, s60, 7")
            for u in range(nu):
                for pl in range(2):
                    for n in range(2):
                        a(f"  s_add_u32 m0, s61, {16384 + (u*2+pl)*2048 + n*1024}\n  s_add_u32 s64, s63, {(u*16+8*n)*1280}\n  buffer_load_dwordx4 v{4+n}, s[{36+4*pl}:{39+4*pl}], s64 offen {NT} lds")
        return f
    def bprod(nch):
        def pre(vm):
            a(f"""  v_lshrrev_b32 v20, 4, v0
  v_min_u32 v20, {nch-1}, v20
  s_mul_i32 s60, s29, {nch}
  s_lshl_b32 s61, s32, 4
  s_add_u32 s60, s60, s61
  v_add_u32 v20, s60, v20                   ; channel
  v_lshlrev_b32 v21, 4, v20
  v_add_u32 v21, {CSS_OFF}, v21
  v_mul_u32_u24 v20, 1280, v20
  v_and_b32 v22, 15, v0
  v_lshl_add_u32 v20, v22, 4, v20""")
            for pl in range(2):
                for n in range(5): a(f"  buffer_load_dwordx4 v[{24+20*pl+4*n}:{27+20*pl+4*n}], v20, s[{36+4*pl}:{39+4*pl}], 0 offen offset:{n*256}")
            vm.add('prod', 10)
        def h0(vm):
            get_tag(a, 23); sum_bf16(a, 24, 20, 64)
        def h1(vm):
            sum_bf16(a, 44, 20, 66)
            red16(a, [64, 66])
            a(f"""  v_mov_b32 v65, v23
  v_mov_b32 v67, v23
  s_mov_b32 exec_lo, 0x00010001
  s_mov_b32 exec_hi, {1 if nch == 3 else 0}
  buffer_store_dwordx4 v[64:67], v21, s[44:47], 0 offen sc1
  s_mov_b64 exec, -1""")
            vm.add('pst')
        hk = {0: h0, 1: h1}; hk.update(RH)
        return dict(pre=pre, hooks=hk) if PROD else {}
    if PROD: srd(a, 44, 12, 0x100000)
    RH = relay_c(a, P) if P.get('relay') else {}
    a("  s_cmp_eq_u32 s31, 1\n  s_cbranch_scc1 K1_ldbY")
    loader_loop(a, 'K1_lbX', 12, issue_b(3), P, tail, **bprod(3))
    a("K1_ldbY:")
    loader_loop(a, 'K1_lbY', 8, issue_b(2), P, tail, **bprod(2))
    a("K1_ldw:")
    srd(a, 36, 10, D*F*2)
    a(f"""
  v_lshrrev_b32 v1, 3, v0
  v_mul_u32_u24 v1, 3072, v1
  s_lshl_b32 s63, s33, 7
  v_add_u32 v1, s63, v1
  v_and_b32 v2, 7, v0
  v_bfe_u32 v3, v0, 4, 1
  v_lshlrev_b32 v3, 1, v3                   ; 2*((l>>4)&1)
  v_xor_b32 v2, v2, v3
  v_lshl_add_u32 v4, v2, 4, v1              ; n even
  v_xor_b32 v2, 4, v2
  v_lshl_add_u32 v5, v2, 4, v1              ; n odd
""")
    def issue_w(nb, fb):
        def f():
            a(f"  s_mul_i32 s63, s60, {64*3072}")
            for b in range(nb):
                for n in range(8):
                    a(f"  s_add_u32 m0, s61, {fb + b*8192 + n*1024}\n  s_add_u32 s64, s63, {8*n*3072 + b*128}\n  buffer_load_dwordx4 v{4+(n&1)}, s[36:39], s64 offen {NT} lds")
        return f
    def wprod(nb):
        def pre(vm):
            a(f"""  v_lshrrev_b32 v20, 3, v0
  s_mul_i32 s60, s29, 40
  v_add_u32 v20, s60, v20                   ; k row
  v_mul_u32_u24 v20, 3072, v20
  s_lshl_b32 s60, s33, 7
  v_add_u32 v20, s60, v20
  v_and_b32 v22, 7, v0
  v_lshl_add_u32 v20, v22, 4, v20
  v_lshlrev_b32 v21, 2, v22
  v_bfe_u32 v22, v0, 4, 1
  v_lshl_add_u32 v21, v22, 1, v21
  v_lshrrev_b32 v22, 5, v0
  v_add_u32 v21, v21, v22
  v_lshlrev_b32 v21, 4, v21
  s_lshl_b32 s60, s33, 4
  s_add_u32 s60, s60, s29
  s_lshl_b32 s60, s60, 9
  s_add_u32 s60, s60, {CSF_OFF}
  v_add_u32 v21, s60, v21
  v_add_u32 v19, {3*8*3072}, v20""")
            for b in range(nb):
                for n in range(5):
                    va, off = (20, n*0) , 0
                    a(f"  s_movk_i32 s61, {n*8*3}\n  s_lshl_b32 s61, s61, 10\n  buffer_load_dwordx4 v[{24+20*b+4*n}:{27+20*b+4*n}], v20, s[36:39], s61 offen offset:{b*128}")
            vm.add('prod', 5*nb)
        def blk(vm, b):
            A = 64; src = 24 + 20*b
            for n in range(5):
                for i in range(4):
                    r = src + 4*n + i
                    if n == 0: a(f"  v_lshlrev_b32 v{A+2*i}, 16, v{r}\n  v_and_b32 v{A+2*i+1}, 0xffff0000, v{r}")
                    else: a(f"  v_lshlrev_b32 v72, 16, v{r}\n  v_and_b32 v73, 0xffff0000, v{r}\n  v_add_f32 v{A+2*i}, v{A+2*i}, v72\n  v_add_f32 v{A+2*i+1}, v{A+2*i+1}, v73")
            a("  s_nop 1")
            for i in range(4): a(f"  v_permlane16_swap_b32 v{A+i}, v{A+i+4}")
            a("  s_nop 1")
            for i in range(4): a(f"  v_add_f32 v{A+i}, v{A+i}, v{A+i+4}")
            a("  s_nop 1")
            for i in range(2): a(f"  v_permlane32_swap_b32 v{A+i}, v{A+i+2}")
            a("  s_nop 1")
            for i in range(2): a(f"  v_add_f32 v{A+i}, v{A+i}, v{A+i+2}")
            a("  s_nop 1")
            for i in range(2): a(f"  v_add_f32_dpp v{76+2*i}, v{A+i}, v{A+i} row_ror:8 {DPP}")
            a(f"""  v_mov_b32 v77, v23
  v_mov_b32 v79, v23
  s_mov_b32 exec_lo, 0x00ff00ff
  s_mov_b32 exec_hi, 0x00ff00ff
  s_movk_i32 s63, {b*8192}
  buffer_store_dwordx4 v[76:79], v21, s[44:47], s63 offen sc1
  s_mov_b64 exec, -1
  s_nop 1""")
            vm.add('pst')
        def h0(vm): get_tag(a, 23); blk(vm, 0)
        def h1(vm): blk(vm, 1)
        return dict(pre=pre, hooks={0: h0, 1: h1} if nb == 2 else {0: h0}) if PROD else {}
    if PROD: srd(a, 44, 12, 0x100000)
    a("  s_cmp_eq_u32 s31, 1\n  s_cbranch_scc1 K1_ldwY")
    loader_loop(a, 'K1_lwX', 8, issue_w(1, 28672), P, tail, **wprod(1))
    a("K1_ldwY:")
    loader_loop(a, 'K1_lwY', 16, issue_w(2, 24576), P, tail, **wprod(2))
    a("K1_relay:")
    a("  s_endpgm")
VX0, VX1, VB0, VB1, VW = 2, 3, 4, 5, 6
ACC = 12
class Role:
    def __init__(self, isP):
        self.isP = isP
        self.nu = 1 if isP else 2
        self.AR = [ACC + 32*u for u in range(self.nu)]
        self.AI = [ACC + 32*u + 16 for u in range(self.nu)]
        self.AF = ACC + 32
        nacc = 96 if isP else 64
        self.nacc = nacc
        self.SET = ACC + nacc
        self.setsz = 40 if isP else 32
        self.free = self.SET
def main_loop(a, R, P):
    def regs(h):
        b = R.SET + h*R.setsz
        X = [b + 4*jm for jm in range(4)]
        Bs = [(b + 16 + 8*u, b + 20 + 8*u) for u in range(R.nu)]
        W = [b + 24 + 4*u for u in range(4)] if R.isP else []
        return X, Bs, W
    def reads(h):
        X, Bs, W = regs(h)
        vx, vb = (VX0, VB0) if h == 0 else (VX1, VB1)
        L = []
        L.append(f"  ds_read_b128 v[{X[0]}:{X[0]+3}], v{vx}")
        for u,(br,bi) in enumerate(Bs):
            L.append(f"  ds_read_b128 v[{br}:{br+3}], v{vb} offset:{u*4096}")
            L.append(f"  ds_read_b128 v[{bi}:{bi+3}], v{vb} offset:{u*4096+2048}")
        for jm in range(1,4): L.append(f"  ds_read_b128 v[{X[jm]}:{X[jm]+3}], v{vx} offset:{jm*2048}")
        for u,w in enumerate(W):
            L.append(f"  ds_read_b64_tr_b16 v[{w}:{w+1}], v{VW+u} offset:{h*4096}")
            L.append(f"  ds_read_b64_tr_b16 v[{w+2}:{w+3}], v{VW+u} offset:{h*4096+512}")
        return L
    def mfmas(h):
        X, Bs, W = regs(h)
        L = []
        for jm in range(4):
            for u,(br,bi) in enumerate(Bs):
                c = R.AR[u] + 4*jm; L.append(f"  v_mfma_f32_16x16x32_bf16 v[{c}:{c+3}], v[{X[jm]}:{X[jm]+3}], v[{br}:{br+3}], v[{c}:{c+3}]")
                c = R.AI[u] + 4*jm; L.append(f"  v_mfma_f32_16x16x32_bf16 v[{c}:{c+3}], v[{X[jm]}:{X[jm]+3}], v[{bi}:{bi+3}], v[{c}:{c+3}]")
        for u,w in enumerate(W):
            for jm in range(4):
                c = R.AF + 16*u + 4*jm; L.append(f"  v_mfma_f32_16x16x32_bf16 v[{c}:{c+3}], v[{w}:{w+3}], v[{X[jm]}:{X[jm]+3}], v[{c}:{c+3}]")
        return L
    def bumps(s):
        d = RING if (s % 3) != 2 else -2*RING
        regs_ = [VX0, VX1, VB0, VB1] + ([VW+u for u in range(4)] if R.isP else [])
        if d > 0: return [f"  v_add_u32 v{r}, {d}, v{r}" for r in regs_]
        return [f"  v_subrev_u32 v{r}, {-d}, v{r}" for r in regs_]
    ST = P.get('stamps')
    if P.get('pre0'): a("  s_barrier")
    a("  s_barrier")
    if ST: stamp(a, 84, ST)
    if P.get('cyc'): a("  s_memtime s[74:75]")
    for r in reads(0): a(r)
    for s in range(10):
        a("  s_waitcnt lgkmcnt(0)")
        interleave(a, mfmas(0), reads(1) + (bumps(s) if s < 9 else []))
        a("  s_waitcnt lgkmcnt(0)")
        if s < 9:
            a("  s_barrier")
            interleave(a, mfmas(1), reads(0))
        else:
            for m in mfmas(1): a(m)
def ffn_epilogue(a, R, P, T):
    RQ = T
    C4 = T+8
    B4 = T+24
    TM = T+40
    a(f"""
  v_and_b32 v1, 15, v0
  v_lshlrev_b32 v1, 4, v1                   ; i*16
  s_lshl_b32 s60, s66, 8                    ; rh*256
  v_add_u32 v1, s60, v1
  v_add_u32 v1, {RSF}, v1
  ds_read_b128 v[{RQ}:{RQ+3}], v1
  ds_read_b128 v[{RQ+4}:{RQ+7}], v1 offset:{QF-RSF}
  v_lshrrev_b32 v1, 4, v0
  v_lshlrev_b32 v1, 4, v1                   ; g*16
  v_add_u32 v1, s64, v1
  v_add_u32 v1, {CS1}, v1
""")
    for u in range(4):
        a(f"  ds_read_b128 v[{C4+4*u}:{C4+4*u+3}], v1 offset:{u*64}")
        a(f"  ds_read_b128 v[{B4+4*u}:{B4+4*u+3}], v1 offset:{B1T-CS1+u*64}")
    a("  s_waitcnt lgkmcnt(0)")
    for uu in range(2):
        for jm in range(4):
            O = TM + 8 + 4*(jm & 1)
            for ui in range(2):
                u = uu*2 + ui
                for pr in range(2):
                    acc = R.AF + 16*u + 4*jm + 2*pr
                    t = TM + 2*pr; m = TM + 4 + 2*pr
                    q = (RQ+4 + (jm & ~1), 'lh'[jm & 1], 'b'); rs = (RQ + (jm & ~1), 'lh'[jm & 1])
                    pk(a, 'fma', t, q, C4+4*u+2*pr, B4+4*u+2*pr)
                    pk(a, 'fma', t, rs, acc, t)
                for pr in range(2):
                    t = TM + 2*pr; m = TM + 4 + 2*pr
                    a(f"  v_max_f32 v{m}, 0, v{t}\n  v_max_f32 v{m+1}, 0, v{t+1}")
                for pr in range(2):
                    t = TM + 2*pr; m = TM + 4 + 2*pr
                    pk(a, 'mul', t, t, m)
                for pr in range(2):
                    t = TM + 2*pr
                    a(f"  v_cvt_pk_bf16_f32 v{O+2*ui+pr}, v{t}, v{t+1}")
            a(f"  s_add_u32 s60, s65, {jm*88*1024 + uu*1024}")
            a(f"  buffer_store_dwordx4 v[{O}:{O+3}], v10, s[40:43], s60 offen sc1")
def ssm_phase1(a, R, P, T):
    nu = R.nu
    RS = T; Q = T+16
    M = {}
    b = T + 32
    for u in range(nu):
        M[u] = dict(LA=b, L16=b+4, C2=b+6, CS=b+8, LS=b+10, EA=b+12, PP=b+14, T0=b+16, T1=b+20, E=b+24)
        b += 26
    M['end'] = b
    a(f"""
  v_lshrrev_b32 v1, 4, v0
  s_lshl_b32 s60, s66, 2
  v_add_u32 v1, s60, v1                     ; sigma
  v_lshlrev_b32 v11, 6, v1                  ; sigma*64
  v_add_u32 v11, {RSA}, v11
""")
    for i in range(4):
        a(f"  ds_read_b128 v[{RS+4*i}:{RS+4*i+3}], v11 offset:{16*i}")
        a(f"  ds_read_b128 v[{Q+4*i}:{Q+4*i+3}], v11 offset:{QA-RSA+16*i}")
    a(f"""
  v_and_b32 v11, 15, v0                     ; p
  s_lshl_b32 s60, s67, 4
  v_add_u32 v11, s60, v11                   ; slot*16+p
  v_lshlrev_b32 v9, 5, v11
  v_add_u32 v9, {LAM}, v9
  v_lshlrev_b32 v11, 3, v11                 ; (slot*16+p)*8
  v_add_u32 v11, {CSL}, v11
  v_lshlrev_b32 v8, 7, v1                   ; sigma*128
  v_and_b32 v7, 15, v0
  v_lshl_add_u32 v8, v7, 3, v8              ; sigma*128+p*8
  s_mul_i32 s60, s67, 1024
  v_add_u32 v7, s60, v8
  v_add_u32 v7, {LST}, v7
  s_mul_i32 s60, s67, 1920
  v_add_u32 v8, s60, v8
  v_add_u32 v8, {EL}, v8
""")
    for u in range(nu):
        m = M[u]
        a(f"  ds_read_b128 v[{m['LA']}:{m['LA']+3}], v9 offset:{u*512}")
        a(f"  ds_read_b128 v[{m['L16']}:{m['L16']+3}], v9 offset:{u*512+16}")
        a(f"  ds_read_b64 v[{m['CS']}:{m['CS']+1}], v11 offset:{u*128}")
        a(f"  ds_read_b64 v[{m['LS']}:{m['LS']+1}], v7 offset:{u*1024}")
    a("  s_waitcnt lgkmcnt(0)")
    for n in range(8):
        for u in range(nu):
            m = M[u]
            for (A, md) in ((R.AR[u], 'l'), (R.AI[u], 'h')):
                pk(a, 'mul', A+2*n, RS+2*n, A+2*n)
        for u in range(nu):
            m = M[u]
            for (A, md) in ((R.AR[u], 'l'), (R.AI[u], 'h')):
                pk(a, 'fma', A+2*n, (Q+2*n, 'n', 'b'), (m['CS'], md), A+2*n)
    cur = {u: (R.AR[u], R.AI[u]) for u in range(nu)}
    for n in range(1, 8):
        for u in range(nu):
            m = M[u]; d = m['T0'] if n & 1 else m['T1']
            hr, hi = cur[u]
            pk(a, 'fma', d, (m['LA'], 'l'), hr, R.AR[u]+2*n)
            pk(a, 'fma', d+2, (m['LA'], 'l'), hi, R.AI[u]+2*n)
        for u in range(nu):
            m = M[u]; d = m['T0'] if n & 1 else m['T1']
            hr, hi = cur[u]
            pk(a, 'fma', d, (m['LA'], 'h', 'b'), hi, d)
            pk(a, 'fma', d+2, (m['LA'], 'h'), hr, d+2)
            cur[u] = (d, d+2)
    for u in range(nu):
        m = M[u]; hr, hi = cur[u]
        ea, e = m['EA'], m['E']; l8r, l8i = m['LA']+2, m['LA']+3
        a(f"""  v_mov_b32 v{ea}, v{hr}
  v_mov_b32 v{ea+1}, v{hi}
  v_fma_f32 v{e}, v{l8r}, v{hr}, v{hr+1}
  v_fma_f32 v{e+1}, v{l8r}, v{hi}, v{hi+1}
  v_fma_f32 v{e}, -v{l8i}, v{hi}, v{e}
  v_fma_f32 v{e+1}, v{l8i}, v{hr}, v{e+1}
  ds_write_b64 v8, v[{e}:{e+1}] offset:{u*1920 + 7*128}""")
    a(f"""
  v_mov_b32 v9, {F_E}
  s_lshl_b32 s60, s67, 2
  v_add_u32 v9, s60, v9
  s_cmp_eq_u32 s66, 0
  s_cbranch_scc0 K1_e1_{int(R.isP)}
  v_mov_b32 v7, 1
  s_waitcnt lgkmcnt(0)
  ds_write_b32 v9, v7
  s_branch K1_e2_{int(R.isP)}
K1_e1_{int(R.isP)}:""")
    poll_lds(a, f'K1_ep_{int(R.isP)}', 9, 7, 0)
    a(f"K1_e2_{int(R.isP)}:")
    EN = M['end']
    for u in range(nu):
        for k in range(7): a(f"  ds_read_b64 v[{EN+14*u+2*k}:{EN+14*u+2*k+1}], v8 offset:{u*1920 + k*128}")
    a("  s_waitcnt lgkmcnt(0)")
    curp = {u: EN+14*u for u in range(nu)}
    for k in range(1, 7):
        for u in range(nu):
            m = M[u]; d = m['PP'] if (k == 6) else (m['T0'] if k & 1 else m['T1'])
            pk(a, 'fma', d, (m['L16'], 'l'), curp[u], EN+14*u+2*k)
        for u in range(nu):
            m = M[u]; d = m['PP'] if (k == 6) else (m['T0'] if k & 1 else m['T1'])
            pk(a, 'fma', d, (m['L16'], 'h'), (curp[u], 's', 'l'), d)
            curp[u] = d
    a(f"""
  s_cmp_eq_u32 s66, 1
  s_cbranch_scc0 K1_nopub_{int(R.isP)}
  v_mov_b32 v9, {F_TAG}
  ds_read_b32 v7, v9
  v_and_b32 v1, 15, v0
  s_add_u32 s60, s32, s67
  s_lshl_b32 s60, s60, 4
  s_mul_i32 s61, s29, 640
  s_add_u32 s60, s60, s61
  v_add_u32 v1, s60, v1
  v_lshlrev_b32 v1, 4, v1
  s_waitcnt lgkmcnt(0)
""")
    for u in range(nu):
        m = M[u]; t = m['T0']
        pk(a, 'fma', m['T1'], (m['L16'], 'l'), m['PP'], m['E'])
        pk(a, 'fma', m['T1'], (m['L16'], 'h'), (m['PP'], 's', 'l'), m['T1'])
        a(f"  v_mov_b32 v{t}, v{m['T1']}\n  v_mov_b32 v{t+1}, v7\n  v_mov_b32 v{t+2}, v{m['T1']+1}\n  v_mov_b32 v{t+3}, v7")
    a("  s_mov_b32 exec_lo, 0\n  s_mov_b32 exec_hi, 0xffff0000")
    for u in range(nu):
        t = M[u]['T0']
        a(f"  buffer_store_dwordx4 v[{t}:{t+3}], v1, s[44:47], 0 offen offset:{u*256} sc1")
    a(f"  s_mov_b64 exec, -1\nK1_nopub_{int(R.isP)}:")
    return M
def ssm_phase2(a, R, P, M):
    nu = R.nu
    a(f"  v_mov_b32 v9, {F_HIN}")
    poll_lds(a, f'K1_hp_{int(R.isP)}', 9, 7, 0)
    for u in range(nu):
        m = M[u]
        a(f"  ds_read_b64 v[{m['T0']}:{m['T0']+1}], v11 offset:{HIN - CSL + u*128}")
    a("  s_waitcnt lgkmcnt(0)")
    for u in range(nu):
        m = M[u]; H = m['T0']; Sx = m['T0']+2; SB = m['T1']
        pk(a, 'fma', Sx, (m['LS'], 'l'), H, m['PP'])
        pk(a, 'fma', Sx, (m['LS'], 'h'), (H, 's', 'l'), Sx)
        pk(a, 'fma', SB, (m['LA']+2, 'l'), Sx, m['EA'])
        pk(a, 'fma', SB, (m['LA']+2, 'h'), (Sx, 's', 'l'), SB)
        a(f"  v_mov_b32 v{H}, v{Sx}\n  v_mov_b32 v{H+1}, v{SB}\n  v_mov_b32 v{SB+2}, v{Sx+1}\n  v_mov_b32 v{SB+3}, v{SB+1}")
    cur = {u: (M[u]['T0'], M[u]['T1']+2) for u in range(nu)}
    for n in range(8):
        for u in range(nu):
            m = M[u]; hr, hi = cur[u]
            pk(a, 'fma', R.AR[u]+2*n, (m['LA'], 'l'), hr, R.AR[u]+2*n)
            pk(a, 'fma', R.AI[u]+2*n, (m['LA'], 'l'), hi, R.AI[u]+2*n)
        for u in range(nu):
            m = M[u]; hr, hi = cur[u]
            pk(a, 'fma', R.AR[u]+2*n, (m['LA'], 'h', 'b'), hi, R.AR[u]+2*n)
            pk(a, 'fma', R.AI[u]+2*n, (m['LA'], 'h'), hr, R.AI[u]+2*n)
            cur[u] = (R.AR[u]+2*n, R.AI[u]+2*n)
    a(f"""
  v_and_b32 v1, 15, v0
  v_lshlrev_b32 v1, 5, v1
  v_lshrrev_b32 v7, 4, v0
  v_lshl_add_u32 v1, v7, 3, v1              ; p*32+g*8
  s_lshl_b32 s60, s28, 12
  s_add_u32 s60, s60, {IMG}
  v_add_u32 v1, s60, v1
  v_lshlrev_b32 v7, 3, v0
  v_add_u32 v7, s60, v7
""")
    for u in range(nu):
        m = M[u]; C2 = m['L16']+2; TT = M['end']
        for jm in range(4):
            for pr in range(2):
                n = 2*jm+pr; t = TT + 8*(jm&1) + 2*pr; hr, hi = R.AR[u]+2*n, R.AI[u]+2*n
                pk(a, 'mul', t, (C2, 'l'), hr)
                pk(a, 'mul', t+4, (C2, 'l', 'b'), hi)
            for pr in range(2):
                n = 2*jm+pr; t = TT + 8*(jm&1) + 2*pr; hr, hi = R.AR[u]+2*n, R.AI[u]+2*n
                pk(a, 'fma', t, (C2, 'h', 'b'), hi, t)
                pk(a, 'fma', t+4, (C2, 'h', 'b'), hr, t+4)
            t = TT + 8*(jm&1); o = TT + 16 + 4*(jm&1)
            a(f"  v_cvt_pk_bf16_f32 v{o}, v{t}, v{t+1}\n  v_cvt_pk_bf16_f32 v{o+1}, v{t+2}, v{t+3}")
            a(f"  v_cvt_pk_bf16_f32 v{o+2}, v{t+4}, v{t+5}\n  v_cvt_pk_bf16_f32 v{o+3}, v{t+6}, v{t+7}")
            a(f"  ds_write_b64 v1, v[{o}:{o+1}] offset:{jm*1024}\n  ds_write_b64 v1, v[{o+2}:{o+3}] offset:{jm*1024+512}")
        FR = M['end'] + 24
        for jm in range(4):
            a(f"  ds_read_b64_tr_b16 v[{FR+4*jm}:{FR+4*jm+1}], v7 offset:{jm*1024}\n  ds_read_b64_tr_b16 v[{FR+4*jm+2}:{FR+4*jm+3}], v7 offset:{jm*1024+512}")
        for jm in range(4):
            a(f"  s_waitcnt lgkmcnt({6-2*jm})")
            a(f"  s_add_u32 s60, s68, {jm*88*1024 + u*1024}")
            a(f"  buffer_store_dwordx4 v[{FR+4*jm}:{FR+4*jm+3}], v10, s[40:43], s60 offen sc1")
def compute(a, P):
    ST = P.get('stamps')
    a("K1_compute:")
    srd_off(a, 40, 12, HF_OFF, HF_BYTES)
    srd_off(a, 44, 12, EC_OFF, 16*640*16)
    if ST: srd_off(a, 48, 12, STAMP_OFF, 0x100000)
    a(f"""
  s_and_b32 s66, s28, 1                     ; rh
  s_lshr_b32 s69, s28, 1                    ; col
  v_and_b32 v1, 15, v0
  v_lshlrev_b32 v1, 7, v1                   ; row*128
  v_lshrrev_b32 v8, 4, v0                   ; g
  v_bfe_u32 v9, v0, 1, 3
  v_xor_b32 v9, v8, v9
  v_lshl_add_u32 v1, v9, 4, v1              ; lanepart
  s_lshl_b32 s60, s66, 13
  v_add_u32 v{VX0}, s60, v1
  v_xor_b32 v{VX1}, 64, v{VX0}
  s_lshl_b32 s60, s29, 1
  s_add_u32 s60, s60, s66                   ; rt
  s_mul_i32 s60, s60, {4*88*1024}
  v_lshlrev_b32 v10, 4, v0
  v_add_u32 v10, s60, v10
  s_cmp_eq_u32 s31, 1
  s_cselect_b32 s67, s69, s69
  s_lshl_b32 s60, s67, 12
  s_add_u32 s60, s60, 16384
  v_add_u32 v{VB0}, s60, v1
  v_xor_b32 v{VB1}, 64, v{VB0}
  s_add_u32 s68, s32, s67
  s_add_u32 s68, s68, 48
  s_lshl_b32 s68, s68, 10                   ; (48+cu)*1024
  s_cmp_eq_u32 s31, 0
  s_cselect_b32 s60, s69, 0
  s_cmp_lg_u32 s60, 0
  s_cbranch_scc1 K1_Q
""")
    R = Role(True)
    a(f"""
  s_mul_i32 s64, s69, s31
  s_add_u32 s65, s33, s64
  s_lshl_b32 s65, s65, 11
  s_lshl_b32 s60, s64, 13
  s_movk_i32 s61, 28672
  s_cmp_eq_u32 s31, 1
  s_cselect_b32 s61, 24576, s61
  s_add_u32 s60, s60, s61                   ; FB
  s_lshl_b32 s64, s64, 8
  v_and_b32 v1, 15, v0                      ; q
  v_lshrrev_b32 v9, 2, v1
  v_lshl_add_u32 v9, v8, 3, v9              ; g*8+(q>>2)
  v_lshlrev_b32 v9, 7, v9
  v_and_b32 v7, 3, v1
  v_lshl_add_u32 v9, v7, 3, v9              ; +(q&3)*8
  v_bfe_u32 v7, v1, 3, 1
  v_and_b32 v1, 1, v8
  v_lshl_add_u32 v7, v1, 1, v7              ; h
  v_lshl_add_u32 v9, v7, 5, v9
  v_add_u32 v{VW}, s60, v9
  v_xor_b32 v{VW+1}, 32, v{VW}
  v_xor_b32 v{VW+2}, 64, v{VW}
  v_xor_b32 v{VW+3}, 96, v{VW}
""")
    for role in (True, False):
        R = Role(role)
        if not role: a("K1_Q:")
        for r in range(R.nacc): a(f"  v_mov_b32 v{ACC+r}, 0")
        main_loop(a, R, P)
        if ST: stamp(a, 86, ST)
        if P.get('cyc'): a("  s_memtime s[76:77]\n  s_waitcnt lgkmcnt(0)\n  s_sub_u32 s76, s76, s74")
        a(f"  v_mov_b32 v9, {F_TAB}")
        poll_lds(a, f'K1_tp_{int(role)}', 9, 7, 0)
        if ST: stamp(a, 88, ST)
        a("  s_nop 7")
        T = R.SET
        M = ssm_phase1(a, R, P, T)
        if ST: stamp(a, 90, ST)
        if role: ffn_epilogue(a, R, P, M['end'])
        if ST: stamp(a, 92, ST)
        ssm_phase2(a, R, P, M)
        if ST: stamp(a, 94, ST)
        a("  s_waitcnt vmcnt(0)")
        if ST:
            stamp(a, 96, ST)
            a(f"  s_cmp_lg_u32 s28, {P.get('stamp_wave',0)}\n  s_cbranch_scc1 K1_end\n  s_mov_b64 exec, 1")
            stamp_store(a, 48, 2, [80,84,86,88,90,92,94,76 if P.get('cyc') else 96], 20, ST, base=0)
        a("  s_endpgm")
def BAR(a, n=[0]):
    n[0] += 1
    a(f"  s_cmp_eq_u32 s70, 0\n  s_cbranch_scc1 K1_nb{n[0]}\n  s_barrier\n  s_sub_u32 s70, s70, 1\nK1_nb{n[0]}:")
def cmul(a, dr, di, ar, ai, br, bi, t):
    a(f"  v_mul_f32 v{t}, v{ai}, v{bi}\n  v_fma_f32 v{t}, v{ar}, v{br}, -v{t}\n  v_mul_f32 v{di}, v{ar}, v{bi}\n  v_fma_f32 v{di}, v{ai}, v{br}, v{di}\n  v_mov_b32 v{dr}, v{t}")
def csq(a, dr, di, ar, ai):
    a(f"  v_mul_f32 v{di}, v{ar}, v{ai}\n  v_mul_f32 v{dr}, v{ai}, v{ai}\n  v_fma_f32 v{dr}, v{ar}, v{ar}, -v{dr}\n  v_add_f32 v{di}, v{di}, v{di}")
def sync(a, P):
    ST = P.get('stamps'); LIM = P.get('poll_limit', 1 << 16)
    a(f"K1_sync:\n  s_mov_b32 s70, {11 if P.get('pre0') else 10}")
    srd(a, 36, 12, 0x100000)
    srd(a, 40, 16, D*2); srd(a, 44, 18, D*2); srd(a, 48, 20, D*2); srd(a, 52, 14, F*2)
    if ST: srd_off(a, 56, 12, STAMP_OFF, 0x100000)
    a(f"""
  v_mov_b32 v1, 0
  buffer_load_dword v2, v1, s[36:39], 0 offen sc1
  s_lshl_b32 s60, s32, 4
  v_add_u32 v3, s60, v0
  v_min_u32 v3, 639, v3
  v_lshlrev_b32 v4, 1, v3
  buffer_load_ushort v5, v4, s[40:43], 0 offen
  buffer_load_ushort v6, v4, s[44:47], 0 offen
  buffer_load_ushort v7, v4, s[48:51], 0 offen
  s_lshl_b32 s60, s33, 7
  v_lshlrev_b32 v4, 2, v0
  v_add_u32 v4, s60, v4
  v_min_u32 v4, {F*2-4}, v4
  buffer_load_dword v8, v4, s[52:55], 0 offen
  v_mov_b32 v10, 0
  v_mov_b32 v11, 0
  v_lshlrev_b32 v13, 3, v0
  v_add_u32 v12, {FL}, v13
  s_mov_b64 exec, 0xff
  ds_write_b64 v12, v[10:11]
  s_mov_b64 exec, -1
  v_add_u32 v12, {EL}, v13
""")
    for sl in range(3):
        a(f"  ds_write_b64 v12, v[10:11] offset:{sl*1920}\n  ds_write_b64 v12, v[10:11] offset:{sl*1920+384}")
    if P.get('prod'):
        srd(a, 76, 4, S*D*2)
        xs_issue(a, 76, 1)
    a(f"  s_waitcnt vmcnt({9 if P.get('prod') else 4})")
    a(f"""
  v_readfirstlane_b32 s71, v2
  s_mul_i32 s72, s71, {TAG_MUL}
  s_add_u32 s72, s72, {TAG_ADD}             ; tag
  v_mov_b32 v9, s72
  v_mov_b32 v12, {F_TAG}
  s_waitcnt lgkmcnt(0)
  ds_write_b32 v12, v9
  s_waitcnt lgkmcnt(0)
""")
    BAR(a)
    if P.get('prod'):
        a("  s_waitcnt vmcnt(0)\n  v_mov_b32 v23, s72")
        xs_part1(a)
        if not P.get('pre0'): BAR(a)
        xs_part2(a, 36, 23)
        BAR(a)
    if not P.get('prod'): a("  s_waitcnt vmcnt(0)")
    a(f"""
  v_lshlrev_b32 v5, 16, v5                  ; lre
  v_lshlrev_b32 v6, 16, v6                  ; lim
  v_lshlrev_b32 v7, 16, v7
  v_mul_f32 v7, 0x3fb8aa3b, v7
  v_exp_f32 v7, v7
  s_nop 0
""")
    bfround(a, 7)
    a(f"""
  v_mul_f32 v12, v7, v5
  v_mul_f32 v13, v7, v6
  v_mul_f32 v12, 0x3fb8aa3b, v12
  v_exp_f32 v12, v12
  v_mul_f32 v13, 0.15915494, v13
  v_sin_f32 v14, v13
  v_cos_f32 v15, v13
  s_nop 0
  v_mul_f32 v16, v12, v15                   ; a
  v_mul_f32 v17, v12, v14                   ; b
  v_subrev_f32 v12, 1.0, v16
  v_mul_f32 v13, v5, v5
  v_fmac_f32 v13, v6, v6
  v_rcp_f32 v13, v13
  v_mul_f32 v14, v12, v5
  v_fmac_f32 v14, v17, v6
  v_mul_f32 v15, v17, v5
  v_fma_f32 v15, -v12, v6, v15
  v_add_f32 v13, v13, v13
  v_mul_f32 v22, v14, v13                   ; c2r
  v_mul_f32 v23, v15, v13                   ; c2i
""")
    csq(a, 24, 25, 16, 17); csq(a, 26, 27, 24, 25); csq(a, 18, 19, 26, 27); csq(a, 20, 21, 18, 19)
    BAR(a)
    csq(a, 28, 29, 20, 21); csq(a, 30, 31, 28, 29); csq(a, 32, 33, 30, 31)
    a(f"""
  v_lshlrev_b32 v12, 5, v0
  v_add_u32 v12, {LAM}, v12
  v_min_u32 v12, {LAM+47*32}, v12
  s_mov_b32 exec_hi, 0xffff
  ds_write_b128 v12, v[16:19]
  ds_write_b128 v12, v[20:23] offset:16
  v_lshrrev_b32 v12, 4, v0
  v_lshlrev_b32 v12, 10, v12
  v_and_b32 v13, 15, v0
  v_lshl_add_u32 v12, v13, 3, v12
  v_add_u32 v12, {LST}, v12
  v_mov_b32 v34, 1.0
  v_mov_b32 v35, 0
  ds_write_b64 v12, v[34:35]
  ds_write_b64 v12, v[20:21] offset:128
  ds_write_b64 v12, v[28:29] offset:256
  ds_write_b64 v12, v[30:31] offset:512
""")
    cmul(a, 34, 35, 28, 29, 20, 21, 38)
    a("  ds_write_b64 v12, v[34:35] offset:384")
    cmul(a, 36, 37, 30, 31, 20, 21, 38)
    a("  ds_write_b64 v12, v[36:37] offset:640")
    cmul(a, 36, 37, 30, 31, 28, 29, 38)
    a("  ds_write_b64 v12, v[36:37] offset:768")
    cmul(a, 36, 37, 30, 31, 34, 35, 38)
    a("  ds_write_b64 v12, v[36:37] offset:896\n  s_mov_b64 exec, -1")
    a(f"""
  v_lshlrev_b32 v34, 16, v8
  v_and_b32 v35, 0xffff0000, v8
  v_lshlrev_b32 v12, 3, v0
  v_add_u32 v12, {B1T}, v12
  ds_write_b64 v12, v[34:35]
""")
    BAR(a)
    G = 40
    a(f"""
  s_mov_b32 s73, {LIM}
  s_lshl_b32 s60, s29, 11                   ; c*128*16
  v_lshlrev_b32 v12, 4, v0
  v_add_u32 v13, s60, v12
  v_add_u32 v13, {XS_OFF}, v13
  v_lshlrev_b32 v14, 4, v3
  v_add_u32 v14, {CSS_OFF}, v14
  v_and_b32 v15, 31, v0
  v_lshlrev_b32 v15, 4, v15
  v_lshrrev_b32 v34, 5, v0
  v_lshl_add_u32 v15, v34, 9, v15           ; pair*16 + (l>>5)*512
  s_lshl_b32 s60, s33, 13
  v_add_u32 v15, s60, v15
  v_add_u32 v15, {CSF_OFF}, v15
  v_add_u32 v39, 4096, v15
  s_movk_i32 s74, 0
  s_cmp_eq_u32 s31, 1
  s_cselect_b32 s74, 8192, 0
K1_gather:
  buffer_load_dwordx4 v[{G}:{G+3}], v13, s[36:39], 0 offen sc1
  buffer_load_dwordx4 v[{G+4}:{G+7}], v13, s[36:39], 0 offen offset:1024 sc1
  buffer_load_dwordx4 v[{G+8}:{G+11}], v14, s[36:39], 0 offen sc1
""")
    for b in range(2):
        for k in range(8):
            r = G + 12 + (b*8+k)*4
            va = 15 if k < 4 else 39
            a(f"  buffer_load_dwordx4 v[{r}:{r+3}], v{va}, s[36:39], {'0' if b == 0 else 's74'} offen offset:{(k&3)*1024} sc1")
    BAR(a); BAR(a)
    a("  s_waitcnt vmcnt(0)\n  v_mov_b32 v34, 0\n  v_mov_b32 v35, s72")
    for i in range(19):
        r = G + 4*i
        a(f"  v_xor_b32 v36, v35, v{r+1}\n  v_xor_b32 v37, v35, v{r+3}\n  v_or3_b32 v34, v34, v36, v37")
    a(f"""
  v_cmp_ne_u32 vcc, 0, v34
  s_cmp_eq_u64 vcc, 0
  s_cbranch_scc1 K1_gok
  s_sub_u32 s73, s73, 1
  s_cmp_lg_u32 s73, 0
  s_cbranch_scc1 K1_gather
K1_gok:
""")
    a(f"""
  v_lshrrev_b32 v34, 4, v0
  v_lshlrev_b32 v34, 6, v34
  v_and_b32 v35, 7, v0
  v_lshl_add_u32 v34, v35, 3, v34
  v_bfe_u32 v35, v0, 3, 1
  v_lshl_add_u32 v34, v35, 2, v34           ; sigma*64+n*8+sub*4
  v_add_u32 v34, {RSA}, v34
  v_bfe_u32 v35, v0, 4, 2
  v_lshlrev_b32 v35, 2, v35
  v_and_b32 v36, 1, v0
  v_lshl_add_u32 v35, v36, 1, v35
  v_bfe_u32 v36, v0, 3, 1
  v_add_u32 v35, v35, v36                   ; i
  v_lshlrev_b32 v35, 4, v35
  v_bfe_u32 v36, v0, 1, 2
  v_lshl_add_u32 v35, v36, 2, v35           ; i*16+jm*4
  v_add_u32 v35, {RSF}, v35
  v_mul_f32 v36, v{G}, v{G+2}
  v_mul_f32 v37, v{G+4}, v{G+6}
  ds_write_b32 v34, v{G+2}
  ds_write_b32 v34, v{G+6} offset:256
  ds_write_b32 v34, v36 offset:{QA-RSA}
  ds_write_b32 v34, v37 offset:{QA-RSA+256}
  ds_write_b32 v35, v{G+2}
  ds_write_b32 v35, v{G+6} offset:256
  ds_write_b32 v35, v36 offset:{QF-RSF}
  ds_write_b32 v35, v37 offset:{QF-RSF+256}
  v_mov_b32 v36, v{G+8}
  v_mov_b32 v37, v{G+10}
  v_lshlrev_b32 v34, 3, v0
  v_add_u32 v34, {CSL}, v34
  s_mov_b32 exec_hi, 0xffff
  ds_write_b64 v34, v[36:37]
  s_mov_b64 exec, -1
""")
    BAR(a)
    for b in range(2):
        r0 = G + 12 + b*32
        for k in range(1, 8):
            a(f"  v_add_f32 v{r0}, v{r0}, v{r0+4*k}\n  v_add_f32 v{r0+2}, v{r0+2}, v{r0+4*k+2}")
        a(f"""  v_mov_b32 v36, v{r0}
  v_mov_b32 v37, v{r0+2}
  v_mov_b32 v34, v{r0}
  v_mov_b32 v35, v{r0+2}
  s_nop 1
  v_permlane32_swap_b32 v36, v34
  v_permlane32_swap_b32 v37, v35
  s_nop 1
  v_add_f32 v36, v36, v34
  v_add_f32 v37, v37, v35
  v_and_b32 v34, 31, v0
  v_lshlrev_b32 v34, 3, v34
  v_add_u32 v34, {CS1 + b*256}, v34
  ds_write_b64 v34, v[36:37]
""")
    a(f"""
  v_mov_b32 v34, {F_TAB}
  v_mov_b32 v35, 1
  s_waitcnt lgkmcnt(0)
  ds_write_b32 v34, v35
""")
    if ST: stamp(a, 84, ST)
    a("K1_drain:\n  s_cmp_eq_u32 s70, 0\n  s_cbranch_scc1 K1_drained\n  s_barrier\n  s_sub_u32 s70, s70, 1\n  s_branch K1_drain\nK1_drained:")
    if ST: stamp(a, 86, ST)
    a(f"""
  s_mov_b32 s73, {LIM}
  v_lshlrev_b32 v14, 4, v3
  v_add_u32 v14, {EC_OFF}, v14
  s_cmp_eq_u32 s29, 0
  s_cbranch_scc1 K1_czero
K1_cpoll:
""")
    for cc in range(15):
        r = G + 4*cc
        a(f"  s_mov_b32 s60, {cc*640*16}\n  buffer_load_dwordx4 v[{r}:{r+3}], v14, s[36:39], s60 offen sc1\n  s_cmp_le_u32 s29, {cc+1}\n  s_cbranch_scc1 K1_cld")
    a(f"""K1_cld:
  s_waitcnt vmcnt(0)
  v_mov_b32 v34, 0
  v_mov_b32 v35, s72
  v_mov_b32 v36, v{G}
  v_mov_b32 v37, v{G+2}
  v_xor_b32 v4, v35, v{G+1}
  v_xor_b32 v5, v35, v{G+3}
  v_or3_b32 v34, v34, v4, v5
""")
    for cc in range(1, 15):
        r = G + 4*cc
        a(f"""  s_cmp_le_u32 s29, {cc}
  s_cbranch_scc1 K1_chor
  v_xor_b32 v4, v35, v{r+1}
  v_xor_b32 v5, v35, v{r+3}
  v_mul_f32 v6, v33, v37
  v_mul_f32 v7, v33, v36
  v_or3_b32 v34, v34, v4, v5
  v_fma_f32 v36, v32, v36, -v6
  v_fma_f32 v37, v32, v37, v7
  v_add_f32 v36, v36, v{r}
  v_add_f32 v37, v37, v{r+2}""")
    a(f"""K1_chor:
  s_mov_b32 exec_hi, 0xffff
  v_cmp_ne_u32 vcc, 0, v34
  s_mov_b64 exec, -1
  s_cmp_eq_u64 vcc, 0
  s_cbranch_scc1 K1_cok
  s_sub_u32 s73, s73, 1
  s_cmp_lg_u32 s73, 0
  s_cbranch_scc1 K1_cpoll
  s_branch K1_cok
K1_czero:
  v_mov_b32 v36, 0
  v_mov_b32 v37, 0
K1_cok:
  v_lshlrev_b32 v34, 3, v0
  v_add_u32 v34, {HIN}, v34
  s_mov_b32 exec_hi, 0xffff
  ds_write_b64 v34, v[36:37]
  s_mov_b64 exec, -1
  v_mov_b32 v34, {F_HIN}
  v_mov_b32 v35, 1
  s_waitcnt lgkmcnt(0)
  ds_write_b32 v34, v35
""")
    if P.get('bump'):
        a(f"""
  s_cmp_eq_u32 s29, 15
  s_cbranch_scc0 K1_nobump
  s_cmp_eq_u32 s30, 0
  s_cbranch_scc0 K1_nobump
  s_add_u32 s71, s71, 1
  v_mov_b32 v35, s71
  v_mov_b32 v34, 0
  s_mov_b64 exec, 1
  buffer_store_dword v35, v34, s[36:39], 0 offen sc1
  s_waitcnt vmcnt(0)
K1_nobump:""")
    if ST:
        stamp(a, 88, ST)
        a("  s_mov_b64 exec, 1")
        stamp_store(a, 56, 2, [84, 86, 88], 20, ST, base=32)
    a("  s_endpgm")
def k1(P):
    a = Asm()
    prologue(a, P); loaders(a, P); compute(a, P); sync(a, P)
    a("K1_end:\n  s_endpgm")
    return ('K1_kernel', a.text(), 256, 100, 256), ('K1_kernel', (256,1,1), (512,1,1), LDS_BYTES)
if __name__ == '__main__':
    import sys
    B = dict(prod=1, bump=1)
    V = dict(k1q=dict(B, pre0=1), k1w=dict(B, pre0=1, relay=1))
    for name, P in V.items():
        P = dict(P); P['stamps'] = True
        k, l = k1(P)
        open(f'g/{name}.s', 'w').write(build([k], [l]))
    print(name, len(k[1].split('\n')), 'lines')
```

```python
from gl import *
def k2(P):
    NB = P.get('k2_nb', 7)
    PF = P.get('k2_pf', 16)
    ROT = P.get('k2_rot', 0)
    ST = P.get('stamps', False)
    NS = 22
    a = Asm()
    a(f"""
  s_cmp_ge_u32 s2, 256
  s_cbranch_scc1 K2_end
  s_load_dwordx2 s[4:5], s[0:1], 0
  s_load_dwordx2 s[6:7], s[0:1], 64
  s_load_dwordx2 s[8:9], s[0:1], 104
  s_load_dwordx4 s[12:15], s[0:1], 112
  s_load_dwordx2 s[10:11], s[0:1], 128      ; ws
""")
    stamp(a, 60, ST)
    a(f"""
  v_lshrrev_b32 v1, 6, v0
  v_and_b32 v2, 63, v0                      ; lane
  v_readfirstlane_b32 s44, v1               ; wave
  s_and_b32 s45, s2, 7
  s_lshr_b32 s46, s2, 3                     ; slot
  s_and_b32 s47, s45, 1
  s_lshl_b32 s47, s47, 2
  s_and_b32 s48, s46, 3
  s_add_u32 s47, s47, s48                   ; ct
  s_lshr_b32 s48, s45, 1
  s_lshl_b32 s48, s48, 3
  s_lshr_b32 s49, s46, 2
  s_add_u32 s48, s48, s49                   ; rt
  v_lshlrev_b32 v3, 4, v2                   ; lane*16
""")
    if ROT:
        a(f"""
  s_lshr_b32 s49, s46, 2
  s_and_b32 s52, s46, 3
  s_mul_i32 s50, s49, {ROT}
  s_mul_i32 s52, s52, 3
  s_add_u32 s50, s50, s52
  s_mul_i32 s52, s50, 21846
  s_lshr_b32 s52, s52, 18                   ; /12
  s_mul_i32 s53, s52, 12
  s_sub_u32 s53, s50, s53
  s_mul_i32 s52, s50, 26215
  s_lshr_b32 s52, s52, 18                   ; /10
  s_mul_i32 s52, s52, 10
  s_sub_u32 s51, s50, s52
  s_add_u32 s51, s51, 12
  s_mov_b32 s50, s53
""")
    else:
        a("  s_mov_b32 s50, 0\n  s_mov_b32 s51, 12")
    a("  s_waitcnt lgkmcnt(0)")
    def adv(reg, j):
        if j == 12: a(f"  s_mov_b32 s{reg}, s51")
        elif j < 12: a(f"  s_add_u32 s{reg}, s{reg}, 1\n  s_cmp_eq_u32 s{reg}, 12\n  s_cselect_b32 s{reg}, 0, s{reg}")
        else: a(f"  s_add_u32 s{reg}, s{reg}, 1\n  s_cmp_eq_u32 s{reg}, 22\n  s_cselect_b32 s{reg}, 12, s{reg}")
    a("  s_cmp_ge_u32 s44, 4\n  s_cbranch_scc1 K2_loader")
    srd(a, 16, 4, S*D*2)
    srd(a, 20, 6, D*2)
    srd(a, 24, 8, D*2)
    srd(a, 28, 12, S*D*4)
    srd_off(a, 32, 10, HF_OFF, HF_BYTES)
    srd_off(a, 40, 10, XS_OFF, S*16)
    if ST: srd_off(a, 36, 10, STAMP_OFF, 0x100000)
    ACF, ACS = 8, 28
    HR = 48
    WS = HR + PF*4
    EX = WS + 40
    EB = EX + 10
    ED = EB + 10
    EXS = ED + 10
    ET = EXS + 4
    NV = ET + 16
    a(f"""
  s_lshl_b32 s52, s48, 2
  s_add_u32 s52, s52, s44
  s_mul_i32 s52, s52, {88*1024}
  v_add_u32 v4, s52, v3                     ; H voffset
  s_mov_b32 s54, s50
  s_lshl_b32 s55, s54, 12
""")
    hj = 0
    def hload(j, k):
        r = HR + ((j*4+k) % PF)*4
        if P.get('no_h'):
            a(f"  buffer_load_dword v{r}, v4, s[40:43], 0 offen"); return
        a(f"  buffer_load_dwordx4 v[{r}:{r+3}], v4, s[32:35], s55 offen offset:{k*1024}")
    a(f"""
  v_and_b32 v5, 15, v2                      ; i
  v_lshrrev_b32 v6, 4, v2                   ; g
  v_lshrrev_b32 v7, 2, v5
  v_lshlrev_b32 v7, 4, v7                   ; (i>>2)*16
  v_and_b32 v1, 1, v5
  v_lshl_add_u32 v7, v1, 3, v7              ; +(i&1)*8
  v_bfe_u32 v1, v5, 1, 1
  v_add_u32 v7, v7, v1
  s_lshl_b32 s52, s48, 6
  s_lshl_b32 s53, s44, 1
  s_add_u32 s52, s52, s53
  v_add_u32 v7, s52, v7                     ; t
  s_mul_i32 s53, s47, 80
  v_lshl_add_u32 v5, v6, 2, s53             ; d0 = ct*80+g*4
  v_lshlrev_b32 v6, 4, v7
  buffer_load_dwordx4 v[{EXS}:{EXS+3}], v6, s[40:43], 0 offen
  v_mul_u32_u24 v7, 640, v7
  v_add_u32 v7, v7, v5
  v_lshlrev_b32 v6, 1, v7
  v_lshlrev_b32 v7, 2, v7
  v_lshlrev_b32 v5, 1, v5
""")
    for j in range(PF//4):
        if j > 0:
            adv(54, j); a("  s_lshl_b32 s55, s54, 12")
        for k in range(4): hload(j, k)
    for nt in range(5):
        a(f"  buffer_load_dwordx2 v[{EX+2*nt}:{EX+2*nt+1}], v6, s[16:19], 0 offen offset:{nt*32}")
        a(f"  buffer_load_dwordx2 v[{EB+2*nt}:{EB+2*nt+1}], v5, s[24:27], 0 offen offset:{nt*32}")
        a(f"  buffer_load_dwordx2 v[{ED+2*nt}:{ED+2*nt+1}], v5, s[20:23], 0 offen offset:{nt*32}")
    NEXTRA = 15
    for r in range(40): a(f"  v_mov_b32 v{ACF+r}, 0")
    a(f"  v_mov_b32 v1, v3\n  v_add_u32 v2, {3*20480}, v3\n  v_add_u32 v0, {6*20480}, v3")
    def wread(j, k, nt):
        if P.get('no_wread'): return
        b = j % NB
        base = ['v1','v2','v0'][b//3]
        r = WS + ((j*4+k) & 1)*20 + nt*4
        a(f"  ds_read_b128 v[{r}:{r+3}], {base} offset:{(b%3)*20480 + (k*5+nt)*1024}")
    def mfma(j, k, nt):
        if P.get('no_mfma'): return
        acc = (ACF if j < 12 else ACS) + nt*4
        w = WS + ((j*4+k) & 1)*20 + nt*4
        h = HR + ((j*4+k) % PF)*4
        a(f"  v_mfma_f32_16x16x32_bf16 v[{acc}:{acc+3}], v[{w}:{w+3}], v[{h}:{h+3}], v[{acc}:{acc+3}]")
    def mid_epilogue():
        a("  s_nop 7\n  s_nop 1")
        m, rs = EXS, EXS+2
        t0, t1, t2, t3 = ET, ET+1, ET+2, ET+3
        for nt in range(5):
            for r in range(4):
                o = ACF + nt*4 + r
                src = lambda base: base + 2*nt + (r >> 1)
                if r & 1: a(f"  v_and_b32 v{t0}, 0xffff0000, v{src(EB)}")
                else: a(f"  v_lshlrev_b32 v{t0}, 16, v{src(EB)}")
                a(f"  v_add_f32 v{o}, v{o}, v{t0}")
                a(f"  v_mul_f32 v{t1}, 0xbfb8aa3b, v{o}")
                a(f"  v_exp_f32 v{t1}, v{t1}")
                if r & 1:
                    a(f"  v_and_b32 v{t2}, 0xffff0000, v{src(EX)}\n  v_and_b32 v{t3}, 0xffff0000, v{src(ED)}")
                else:
                    a(f"  v_lshlrev_b32 v{t2}, 16, v{src(EX)}\n  v_lshlrev_b32 v{t3}, 16, v{src(ED)}")
                a(f"  v_add_f32 v{t1}, 1.0, v{t1}")
                a(f"  v_rcp_f32 v{t1}, v{t1}")
                a(f"  v_sub_f32 v{t0}, v{t2}, v{m}")
                bfround(a, t0)
                a(f"  v_mul_f32 v{t0}, v{t0}, v{rs}")
                bfround(a, t0)
                a(f"  v_mul_f32 v{t0}, v{t0}, v{t3}")
                bfround(a, t0)
                a(f"  v_mul_f32 v{o}, v{o}, v{t1}")
                d = ET + 4 + r
                a(f"  v_fma_f32 v{d}, v{t0}, v{o}, v{t2}")
            a(f"  v_mov_b32 v{EB+2*nt}, v{ET+4}\n  v_mov_b32 v{EB+2*nt+1}, v{ET+5}\n  v_mov_b32 v{ED+2*nt}, v{ET+6}\n  v_mov_b32 v{ED+2*nt+1}, v{ET+7}")
    stamp(a, 62, ST)
    a("  s_barrier")
    stamp(a, 64, ST)
    for nt in range(5): wread(0, 0, nt)
    NQ = 88
    issued_h = PF
    for q in range(NQ):
        j, k = divmod(q, 4)
        nq = q + 1
        nj, nk = divmod(nq, 4)
        if nq < NQ and nk == 0:
            a("  s_barrier")
        out_h = min(issued_h, NQ) - (q + 1)
        extra = NEXTRA if q < PF else 0
        if q == 48:
            pass
        cnt = out_h + extra
        a(f"  s_waitcnt vmcnt({min(cnt, 63)})")
        for nt in range(5):
            if nq < NQ: lg = 4 if True else 0
            else: lg = 4 - nt
            a(f"  s_waitcnt lgkmcnt({lg})")
            mfma(j, k, nt)
            if nq < NQ: wread(nj, nk, nt)
        pq = q + PF
        if pq < NQ:
            pj, pk = divmod(pq, 4)
            if pk == 0:
                adv(54, pj); a("  s_lshl_b32 s55, s54, 12")
            hload(pj, pk)
            issued_h += 1
        if q == 47:
            if ST: stamp(a, 66, ST)
            mid_epilogue()
            if ST: stamp(a, 68, ST)
    stamp(a, 70, ST)
    a("  s_nop 7\n  s_nop 1")
    for nt in range(5):
        for r in range(4):
            b = [EB+2*nt, EB+2*nt+1, ED+2*nt, ED+2*nt+1][r]
            a(f"  v_fma_f32 v{ACS+nt*4+r}, v{ACS+nt*4+r}, v{ACF+nt*4+r}, v{b}")
        a(f"  buffer_store_dwordx4 v[{ACS+nt*4}:{ACS+nt*4+3}], v7, s[28:31], 0 offen offset:{nt*64} sc1")
    a("  s_waitcnt vmcnt(0)")
    if ST:
        stamp(a, 72, ST)
        a("  s_cmp_lg_u32 s44, 0\n  s_cbranch_scc1 K2_end")
        a("  s_mov_b64 exec, 1")
        stamp_store(a, 36, 2, [60,62,64,66,68,70,72], ET, ST, base=32)
    a("  s_endpgm")
    a("K2_loader:")
    srd_off(a, 36, 10, WF_OFF, WF_BYTES)
    a(f"""
  s_sub_u32 s44, s44, 4
  s_mul_i32 s52, s44, 5120                  ; lw*5120
  s_mul_i32 s53, s47, {88*5120}
  s_add_u32 s53, s53, s52
  v_add_u32 v4, s53, v3                     ; voffset
  s_mov_b32 s54, s50
""")
    def wissue(j):
        if j > 0: adv(54, j)
        b = j % NB
        a(f"  s_mul_i32 s55, s54, 20480\n  s_add_u32 m0, s52, {b*20480}\n  s_add_u32 s56, s55, 4096")
        if P.get('no_w'):
            for i in range(5): a(f"  buffer_load_dword v8, v3, s[36:39], 0 offen")
            return
        for i in range(4): a(f"  buffer_load_dwordx4 v4, s[36:39], s55 offen offset:{i*1024} lds")
        a(f"  s_add_u32 m0, s52, {b*20480+4096}\n  s_nop 0\n  buffer_load_dwordx4 v4, s[36:39], s56 offen lds")
    AH = NB - 2
    for j in range(AH): wissue(j)
    for s in range(NS):
        issued = min(AH + s, NS)
        a(f"  s_waitcnt vmcnt({min(5*(issued - s - 1), 63)})")
        if P.get('lstamp') and s < 16: a(f"  s_memtime s[{60+2*s}:{61+2*s}]") if (s % 2 == 0) else None
        a("  s_barrier")
        if P.get('lstamp') and s < 16: a(f"  s_memtime s[{60+2*s}:{61+2*s}]") if (s % 2 == 1) else None
        if AH + s < NS: wissue(AH + s)
    if P.get('lstamp'):
        srd_off(a, 36, 10, STAMP_OFF+0x8000, 0x100000)
        a("  s_cmp_lg_u32 s44, 0\n  s_cbranch_scc1 K2_end\n  s_mov_b64 exec, 1")
        stamp_store(a, 36, 2, [60+2*i for i in range(16)], 8, True, slot_bytes=64, base=0)
    a("K2_end:\n  s_endpgm")
    return ('K2_kernel', a.text(), NV, 100, (NV+3)//4*4), ('K2_kernel', (256,1,1), (512,1,1), NB*20480)
if __name__ == '__main__':
    import sys
    for name, P in [('k2a', dict(stamps=True)), ('k2r', dict(stamps=True, k2_rot=1)), ('k2r2', dict(stamps=True, k2_rot=5))]:
        k, l = k2(P)
        open(f'g/{name}.s', 'w').write(build([k], [l]))
    print('vgpr', k[2])
```

```python
import numpy as np
S, D, F = 2048, 640, 1536
XS_OFF = 0x1000
HF_OFF = 0x100000
WF_OFF = 0xC00000
HF_BYTES = 32*4*88*1024
WF_BYTES = 8*88*5*1024
STAMP_OFF = 0xF000000
def bf2f(a): return (a.astype(np.uint32) << 16).view(np.float32)
def f2bf(x):
    x = np.ascontiguousarray(x, dtype=np.float32); u = x.view(np.uint32)
    r = ((u + 0x7fff + ((u >> 16) & 1)) >> 16).astype(np.uint16)
    return r
def bfr(x): return bf2f(f2bf(x))
def load(d='work'):
    g = lambda n, sh: bf2f(np.fromfile(f'{d}/in_{n}.bin', dtype=np.uint16)).reshape(sh)
    return dict(x=g('A_x',(S,D)), lre=g('A_Lambda_re',(D,)), lim=g('A_Lambda_im',(D,)), Bre=g('A_B_re',(D,D)), Bim=g('A_B_im',(D,D)),
                Cre=g('A_C_re',(D,D)), Cim=g('A_C_im',(D,D)), ldt=g('A_log_dt',(D,)), Dk=g('A_Dskip',(D,)),
                w1=g('B_w1',(D,F)), b1=g('B_b1',(F,)), w2=g('B_w2',(F,D)), b2=g('B_b2',(D,)))
def tmap(rt, jm, i):
    return rt*64 + (i>>2)*16 + (i&1)*8 + jm*2 + ((i>>1)&1)
def stats(I):
    x = I['x'].astype(np.float64)
    m = x.mean(1); v = ((x-m[:,None])**2).mean(1)
    mb = bfr(m.astype(np.float32)); vb = bfr(v.astype(np.float32))
    sd = bfr(np.sqrt(bfr(vb+np.float32(1e-5))))
    return mb, (1.0/sd).astype(np.float32)
def lam(I):
    dt = bfr(np.exp(I['ldt']))
    L = I['lre'].astype(np.float64) + 1j*I['lim'].astype(np.float64)
    Lb = np.exp(dt.astype(np.float64)*L)
    return Lb, (Lb-1.0)/L
def model_h(I, fold=False):
    mb, rs = stats(I)
    x = I['x'].astype(np.float64)
    def proj(W):
        return (x @ W.T.astype(np.float64) - mb[:,None].astype(np.float64)*W.sum(1)[None].astype(np.float64))*rs[:,None]
    U = proj(I['Bre']) + 1j*proj(I['Bim'])
    Lb, coef = lam(I)
    h = np.zeros(D, dtype=np.complex128); hs = np.empty_like(U)
    for t in range(S):
        h = Lb*h + U[t]; hs[t] = h
    raw = hs.copy()
    hs = hs*coef[None]
    h1 = proj(I['w1'].T) + I['b1'][None]
    hh = np.maximum(h1, 0)**2
    return (2*hs.real).astype(np.float32), (-2*hs.imag).astype(np.float32), hh.astype(np.float32), raw
def kslot_f(g, e): return g*4+e if e < 4 else 16+g*4+e-4
def make_HF(hre, him, hh):
    out = np.zeros((32,4,88,64,8), dtype=np.uint16)
    l = np.arange(64); i = l & 15; g = l >> 4
    hhb, hrb, hib = f2bf(hh), f2bf(hre), f2bf(him)
    for rt in range(32):
        for jm in range(4):
            t = tmap(rt, jm, i)
            for e in range(8):
                fo = g*4+e if e < 4 else 16+g*4+e-4
                out[rt,jm,:48,:,e] = hhb[t[None,:], (np.arange(48)*32)[:,None]+fo[None,:]]
                ch = (np.arange(40)*16)[:,None] + (g*4+(e&3))[None,:]
                out[rt,jm,48:,:,e] = (hrb if e < 4 else hib)[t[None,:], ch]
    return out
def make_WF(I):
    out = np.zeros((8,88,5,64,8), dtype=np.uint16)
    l = np.arange(64); i = l & 15; g = l >> 4
    w2b, crb, cib = f2bf(I['w2']), f2bf(I['Cre']), f2bf(I['Cim'])
    for ct in range(8):
        for nt in range(5):
            d = ct*80+nt*16+i
            for e in range(8):
                fo = g*4+e if e < 4 else 16+g*4+e-4
                out[ct,:48,nt,:,e] = w2b[(np.arange(48)*32)[:,None]+fo[None,:], d[None,:]]
                ch = (np.arange(40)*16)[:,None] + (g*4+(e&3))[None,:]
                out[ct,48:,nt,:,e] = (crb if e < 4 else cib)[d[None,:], ch]
    return out
def make_XS(I, tag=0):
    mb, rs = stats(I)
    o = np.zeros((S,4), dtype=np.uint32)
    o[:,0] = mb.view(np.uint32); o[:,1] = tag; o[:,2] = rs.view(np.uint32); o[:,3] = tag
    return o
if __name__ == '__main__':
    I = load()
    hre, him, hh, raw = model_h(I)
    HF = make_HF(hre, him, hh); WF = make_WF(I); XS = make_XS(I)
    HF.tofile('m_HF.bin'); WF.tofile('m_WF.bin'); XS.tofile('m_XS.bin'); raw.astype(np.complex64).tofile('m_raw.bin')
    mb, rs = stats(I)
    x = I['x']; xn = bfr(bfr(x-mb[:,None])*rs[:,None])
    s = bfr(hre) @ I['Cre'].T + bfr(him) @ I['Cim'].T + bfr(xn*I['Dk'][None])
    o = bfr(hh) @ I['w2'] + I['b2'][None]
    out = x + s*(o/(1+np.exp(-o)))
    ref = np.fromfile('ref0.bin', dtype=np.float32).reshape(S,D)
    print('model err', np.abs(out-ref).max())
CSS_OFF = 0x9000
EC_OFF  = 0x10000
CSF_OFF = 0x40000
TAG_MUL, TAG_ADD = 0x9E3779B1, 0x7F4A7C15
def tag_of(epoch): return (epoch*TAG_MUL + TAG_ADD) & 0xffffffff
def make_CSS(I, tag):
    o = np.zeros((640,4), dtype=np.uint32)
    o[:,0] = I['Bre'].astype(np.float64).sum(1).astype(np.float32).view(np.uint32); o[:,2] = I['Bim'].astype(np.float64).sum(1).astype(np.float32).view(np.uint32)
    o[:,1] = tag; o[:,3] = tag
    return o
def make_CSF(I, tag):
    o = np.zeros((24,16,32,4), dtype=np.uint32)
    w = I['w1'].astype(np.float64).reshape(16,40,24,32,2).sum(1).astype(np.float32)
    o[...,0] = w[...,0].transpose(1,0,2).view(np.uint32); o[...,2] = w[...,1].transpose(1,0,2).view(np.uint32)
    o[...,1] = tag; o[...,3] = tag
    return o
def dump_handoff(epoch=0):
    I = load(); t = tag_of(epoch)
    make_XS(I, t).tofile('m_XS.bin'); make_CSS(I, t).tofile('m_CSS.bin'); make_CSF(I, t).tofile('m_CSF.bin')
    np.array([epoch,0,0,0], dtype=np.uint32).tofile('m_EP.bin')
if __name__ == '__main__':
    dump_handoff(0)
```

```python
import sys
from gl import *
from k1_gen import k1
from k2_gen import k2
def two(P1, P2):
    a, la = k1(P1); b, lb = k2(P2)
    return build([a, b], [la, lb])
if __name__ == '__main__':
    B = dict(prod=1, bump=1, pre0=1, relay=1)
    open('g/two.s', 'w').write(two(B, {}))
    open('g/two_r.s', 'w').write(two(dict(B, rot_a=1), {}))
    open('g/two_st.s', 'w').write(two(B, dict(stamps=True)))
```

```python
from asmlib import *
from layout import *
def srd(a, d, lo, nbytes):
    a(f"  s_mov_b32 s{d}, s{lo}\n  s_and_b32 s{d+1}, s{lo+1}, 0xffff\n  s_mov_b32 s{d+2}, {nbytes}\n  s_mov_b32 s{d+3}, 0x20000")
def srd_off(a, d, lo, off, nbytes):
    a(f"  s_add_u32 s{d}, s{lo}, {off}\n  s_addc_u32 s{d+1}, s{lo+1}, 0\n  s_and_b32 s{d+1}, s{d+1}, 0xffff\n  s_mov_b32 s{d+2}, {nbytes}\n  s_mov_b32 s{d+3}, 0x20000")
def vr(b, n=1): return f"v{b}" if n == 1 else f"v[{b}:{b+n-1}]"
def sr(b, n=1): return f"s{b}" if n == 1 else f"s[{b}:{b+n-1}]"
def bfround(a, v, d=None):
    d = v if d is None else d
    a(f"  v_cvt_pk_bf16_f32 v{d}, v{v}, v{v}\n  v_lshlrev_b32 v{d}, 16, v{d}")
def stamp(a, sreg, on):
    if on: a(f"  s_memrealtime s[{sreg}:{sreg+1}]")
def stamp_store(a, srdreg, wgreg, sregs, vtmp, on, slot_bytes=64, base=0):
    if not on: return
    a("  s_waitcnt lgkmcnt(0)")
    a(f"  s_mul_i32 s3, s{wgreg}, {slot_bytes}\n  v_mov_b32 v{vtmp}, s3")
    n = len(sregs)
    for i, s in enumerate(sregs):
        a(f"  v_mov_b32 v{vtmp+1}, s{s}")
        a(f"  buffer_store_dword v{vtmp+1}, v{vtmp}, s[{srdreg}:{srdreg+3}], 0 offen offset:{base+4*i}")
def pk(a, op, d, *srcs):
    sel, selh, nl, nh, rs = [], [], [], [], []
    for s in srcs:
        if isinstance(s, int): s = (s, 'n', '')
        if len(s) == 2: s = (s[0], s[1], '')
        r, m, ng = s
        assert r % 2 == 0, (op, d, srcs)
        rs.append(f"v[{r}:{r+1}]")
        sel.append({'n':0,'l':0,'h':1,'s':1}[m]); selh.append({'n':1,'l':0,'h':1,'s':0}[m])
        nl.append(1 if ng in ('b','l') else 0); nh.append(1 if ng in ('b','h') else 0)
    assert d % 2 == 0
    f = lambda x: '[' + ','.join(map(str, x)) + ']'
    t = f"  v_pk_{op}_f32 v[{d}:{d+1}], " + ", ".join(rs)
    if any(sel): t += f" op_sel:{f(sel)}"
    if not all(selh): t += f" op_sel_hi:{f(selh)}"
    if any(nl): t += f" neg_lo:{f(nl)}"
    if any(nh): t += f" neg_hi:{f(nh)}"
    a(t)
def interleave(a, mains, fillers, start=0, per=1):
    fl = list(fillers)
    for i, m in enumerate(mains):
        a(m)
        if i >= start:
            for _ in range(per):
                if fl: a(fl.pop(0))
    for f in fl: a(f)

def stamp_dbg(a, sregs, idx0, mode, srd0=48, vt=20):
    a("  s_waitcnt lgkmcnt(0)")
    a(f"  s_load_dwordx2 s[{srd0}:{srd0+1}], s[0:1], 120\n  s_waitcnt lgkmcnt(0)")
    a(f"  s_and_b32 s{srd0+1}, s{srd0+1}, 0xffff\n  s_mov_b32 s{srd0+2}, 256\n  s_mov_b32 s{srd0+3}, 0x20000")
    a(f"  v_mov_b32 v{vt}, 0")
    for i, s in enumerate(sregs):
        k = idx0 + i
        if mode == 'max':
            if k == 0: a(f"  s_not_b32 s3, s{s}")
            else: a(f"  s_mov_b32 s3, s{s}")
            a(f"  v_mov_b32 v{vt+1+(i&1)}, s3\n  buffer_atomic_umax v{vt+1+(i&1)}, v{vt}, s[{srd0}:{srd0+3}], 0 offen offset:{4*k} sc1\n  s_waitcnt vmcnt(0)")
        else:
            a(f"  s_and_b32 s3, s{s}, 0x3fffff\n  v_mov_b32 v{vt+1+(i&1)}, s3\n  buffer_atomic_add v{vt+1+(i&1)}, v{vt}, s[{srd0}:{srd0+3}], 0 offen offset:{4*k} sc1\n  s_waitcnt vmcnt(0)")
```

```python
from gl import *
RING = 40960
TB = 122880
FL = TB; RSA = TB+256; QA = RSA+512; RSF = QA+512; QF = RSF+512
CSL = TB+2304; LAM = TB+2688; LST = TB+5760; CS1 = TB+8832; B1T = TB+9344
EL = TB+9856; HIN = TB+15616; IMG = TB+16384
F_TAB, F_HIN, F_E, F_TAG, F_HF, F_FD = FL, FL+4, FL+8, FL+32, FL+36, FL+48
F_W, F_P2 = FL+40, FL+64
STG = 163840 - 4096
LDS_BYTES = 163840
WFL_OFF = 0x80000
def poll_lds(a, lbl, addr_v, tmp, off, sreg=60):
    a(f"""{lbl}:
  ds_read_b32 v{tmp}, v{addr_v} offset:{off}
  s_waitcnt lgkmcnt(0)
  v_readfirstlane_b32 s{sreg}, v{tmp}
  s_cmp_eq_u32 s{sreg}, 0
  s_cbranch_scc1 {lbl}""")
def prologue(a, P):
    a(f"""
  s_cmp_ge_u32 s2, 256
  s_cbranch_scc1 K1_end
  s_load_dwordx2 s[4:5], s[0:1], 0
  s_load_dwordx2 s[6:7], s[0:1], 24
  s_load_dwordx2 s[8:9], s[0:1], 32
  s_load_dwordx2 s[10:11], s[0:1], 80
  s_load_dwordx2 s[12:13], s[0:1], 128
  s_load_dwordx2 s[14:15], s[0:1], 88
  s_load_dwordx2 s[16:17], s[0:1], 8
  s_load_dwordx2 s[18:19], s[0:1], 16
  s_load_dwordx2 s[20:21], s[0:1], 56
  s_load_dwordx2 s[22:23], s[0:1], 40
  s_load_dwordx2 s[24:25], s[0:1], 48
  s_load_dwordx2 s[26:27], s[0:1], 96
""")
    stamp(a, 80, P.get('stamps'))
    a(f"""
  v_lshrrev_b32 v1, 6, v0
  v_and_b32 v0, 63, v0                      ; lane
  v_readfirstlane_b32 s28, v1               ; wave
  s_and_b32 s60, s2, 7                      ; x
  s_lshr_b32 s61, s2, 3                     ; slot
  s_lshr_b32 s62, s61, 3
  s_lshl_b32 s62, s62, 2
  s_lshr_b32 s63, s60, 1
  s_add_u32 s29, s62, s63                   ; c
  s_and_b32 s62, s60, 1
  s_lshl_b32 s62, s62, 3
  s_and_b32 s63, s61, 7
  s_add_u32 s30, s62, s63                   ; j
""")
    if P.get('map8'):
        a("""  s_and_b32 s62, s60, 1
  s_lshl_b32 s62, s62, 3
  s_lshr_b32 s63, s61, 2
  s_add_u32 s29, s62, s63                   ; c = 8*(x&1) + (slot>>2)
  s_lshr_b32 s62, s60, 1
  s_lshl_b32 s62, s62, 2
  s_and_b32 s63, s61, 3
  s_add_u32 s30, s62, s63                   ; j = 4*(x>>1) + (slot&3)""")
    a(f"""
  s_and_b32 s31, s30, 1                     ; type (1 = Y)
  s_lshr_b32 s35, s30, 1                    ; m
  s_mul_i32 s32, s35, 5
  s_mul_i32 s62, s31, 3
  s_add_u32 s32, s32, s62                   ; cu0
  s_mul_i32 s33, s35, 3
  s_add_u32 s33, s33, s31                   ; blk0
  s_and_b32 s62, s61, {3 if P.get('map8') else 7}
  s_mul_i32 s62, s62, {P.get('rot_a', 0)}
  s_lshr_b32 s63, s61, {2 if P.get('map8') else 3}
  s_mul_i32 s63, s63, {P.get('rot_b', 0)}
  s_add_u32 s62, s62, s63
  s_mul_i32 s63, s62, 6554
  s_lshr_b32 s63, s63, 16
  s_mul_i32 s63, s63, 10
  s_sub_u32 s34, s62, s63                   ; rot
  s_waitcnt lgkmcnt(0)
""")
    stamp(a, 82, P.get('lst'))
    a(f"""
  s_cmp_lt_u32 s28, 4
  s_cbranch_scc1 K1_compute
  s_cmp_eq_u32 s28, 4
  s_cbranch_scc1 K1_ldx
  s_cmp_eq_u32 s28, 5
  s_cbranch_scc1 K1_ldb
  s_cmp_eq_u32 s28, 6
  s_cbranch_scc1 K1_ldw
  s_branch K1_sync
""")
def tick(a, P, idx):
    if not P.get('ticks'): return
    a("  s_memrealtime s[98:99]\n  s_waitcnt lgkmcnt(0)")
    if idx is None: a("  s_sub_u32 m0, s97, 0\n  s_nop 0\n  v_writelane_b32 v250, s98, m0\n  s_add_u32 s97, s97, 1")
    else: a(f"  v_writelane_b32 v250, s98, {idx}")
def tick_store(a, P):
    if not P.get('ticks'): return
    srd_off(a, 92, 12, STAMP_OFF + 0x10000, 0x100000)
    a("  s_lshl_b32 s98, s2, 3\n  s_add_u32 s98, s98, s28\n  s_lshl_b32 s98, s98, 8\n  v_lshlrev_b32 v251, 2, v0\n  v_add_u32 v251, s98, v251\n  buffer_store_dword v250, v251, s[92:95], 0 offen")
class VM:
    def __init__(self): self.ops = []
    def add(self, tag, n=1): self.ops += [tag]*n
    def after(self, tag):
        last = max(i for i, t in enumerate(self.ops) if t == tag)
        return min(len(self.ops) - 1 - last, 63)
def loader_loop(a, name, N, issue, P, tail, pre=None, hooks=None):
    vm = VM()
    if pre: pre(vm)
    a(f"  s_mov_b32 s60, s34\n  s_mov_b32 s61, 0")
    def adv():
        a(f"""  s_add_u32 s60, s60, 1
  s_cmp_eq_u32 s60, 10
  s_cselect_b32 s60, 0, s60
  s_add_u32 s61, s61, {RING}
  s_cmp_eq_u32 s61, {3*RING}
  s_cselect_b32 s61, 0, s61""")
    def iss(s):
        issue(); vm.add(('st', s), N); adv()
    iss(0)
    if not P.get('pre0b'): iss(1)
    LS = P.get('lst') and name == 'K1_lx'
    if P.get('pre0'):
        stamp(a, 86, LS)
        a("  s_barrier")
        stamp(a, 88, LS)
        if hooks and not (P.get('lw_late') and name.startswith('K1_lw')) and not (P.get('lb_late') and name.startswith('K1_lb')):
            a(f"  s_waitcnt vmcnt({vm.after('prod')})")
            stamp(a, 90, LS)
            for s in sorted(h for h in hooks if h < 2): hooks[s](vm)
            hooks = {h: f for h, f in hooks.items() if h >= 2}
        stamp(a, 92, LS)
        if P.get('pre0b'): iss(1)
        if P.get('pre2'): iss(2)
    for s in range(10):
        a(f"  s_waitcnt vmcnt({vm.after(('st', s))})")
        if s == 0: stamp(a, 94, LS)
        tick(a, P, 2*s)
        a("  s_barrier")
        tick(a, P, 2*s+1)
        if s == 0: stamp(a, 96, LS)
        if s + 2 < 10 and not (s == 0 and P.get('pre2')): iss(s + 2)
        if hooks and s in hooks: hooks[s](vm)
        if hooks and s == 0 and 10 in hooks: hooks[10](vm)
        if P.get('fuse') and P.get('prepoll') and s == 8: P['fuse'].prepoll(a, vm)
    if P.get('fuse'): a("  s_barrier")
    tick(a, P, 20); tick_store(a, P)
    tail(vm)
DPP = 'row_mask:0xf bank_mask:0xf'
def red16(a, regs):
    for r in (8, 4, 2, 1):
        if len(regs) < 3: a("  s_nop 1")
        for v in regs: a(f"  v_add_f32_dpp v{v}, v{v}, v{v} row_ror:{r} {DPP}")
    a("  s_nop 0")
def xs_issue(a, srdx, wq, vm=None):
    a(f"""  v_lshrrev_b32 v20, 4, v0
  s_lshl_b32 s60, s29, 7
  s_lshl_b32 s61, s30, 3
  s_add_u32 s60, s60, s61
  s_add_u32 s60, s60, {4*wq}
  v_add_u32 v20, s60, v20                   ; row
  v_lshlrev_b32 v21, 4, v20
  v_add_u32 v21, {XS_OFF}, v21
  v_mul_u32_u24 v20, 1280, v20
  v_and_b32 v22, 15, v0
  v_lshl_add_u32 v20, v22, 4, v20""")
    for n in range(5): a(f"  buffer_load_dwordx4 v[{24+4*n}:{27+4*n}], v20, s[{srdx}:{srdx+3}], 0 offen offset:{n*256}")
    if vm: vm.add('prod', 5)
def xs_part1(a):
    U = 48
    for i in range(20): a(f"  v_lshlrev_b32 v{U+2*i}, 16, v{24+i}\n  v_and_b32 v{U+2*i+1}, 0xffff0000, v{24+i}")
    for k in range(4): a(f"  v_add_f32 v{88+k}, v{U+k}, v{U+4+k}")
    for i in range(2, 10):
        for k in range(4): a(f"  v_add_f32 v{88+k}, v{88+k}, v{U+4*i+k}")
    a("  v_add_f32 v88, v88, v89\n  v_add_f32 v90, v90, v91\n  v_add_f32 v88, v88, v90")
    red16(a, [88])
    a(f"  v_mul_f32 v92, {float(np.float32(1/640.))!r}, v88            ; mean")
def xs_part2(a, srdw, tagv, vm=None):
    U = 48
    for i in range(40): a(f"  v_sub_f32 v{U+i}, v{U+i}, v92")
    for k in range(4): a(f"  v_mul_f32 v{88+k}, v{U+k}, v{U+k}")
    for i in range(1, 10):
        for k in range(4): a(f"  v_fmac_f32 v{88+k}, v{U+4*i+k}, v{U+4*i+k}")
    a("  v_add_f32 v88, v88, v89\n  v_add_f32 v90, v90, v91\n  v_add_f32 v88, v88, v90")
    red16(a, [88])
    a(f"  v_mul_f32 v88, {float(np.float32(1/640.))!r}, v88            ; var")
    bfround(a, 92, 96)
    bfround(a, 88)
    a("  v_add_f32 v88, 0x3727c5ac, v88")
    bfround(a, 88)
    a("  v_sqrt_f32 v88, v88\n  s_nop 0")
    bfround(a, 88)
    a(f"""  v_rcp_f32 v98, v88
  v_mov_b32 v97, v{tagv}
  v_mov_b32 v99, v{tagv}
  s_mov_b32 exec_lo, 0x00010001
  s_mov_b32 exec_hi, 0x00010001
  buffer_store_dwordx4 v[96:99], v21, s[{srdw}:{srdw+3}], 0 offen sc1
  s_mov_b64 exec, -1""")
    if vm: vm.add('pst')
def get_tag(a, v):
    a(f"  v_mov_b32 v{v}, {F_TAG}\n  ds_read_b32 v{v}, v{v}\n  s_waitcnt lgkmcnt(0)")
def sum_bf16(a, src, n, acc):
    a(f"  v_lshlrev_b32 v{acc}, 16, v{src}\n  v_and_b32 v{acc+1}, 0xffff0000, v{src}")
    for i in range(1, n):
        a(f"  v_lshlrev_b32 v{acc+2}, 16, v{src+i}\n  v_and_b32 v{acc+3}, 0xffff0000, v{src+i}\n  v_add_f32 v{acc}, v{acc}, v{acc+2}\n  v_add_f32 v{acc+1}, v{acc+1}, v{acc+3}")
    a(f"  v_add_f32 v{acc}, v{acc}, v{acc+1}")
def div10(a, d, r, src):
    a(f"  s_mul_i32 s{d}, s{src}, 6554\n  s_lshr_b32 s{d}, s{d}, 16\n  s_mul_i32 s{r}, s{d}, 10\n  s_sub_u32 s{r}, s{src}, s{r}")
def dt_split(a, ct, nt, dt):
    a(f"  s_mul_i32 s{ct}, s{dt}, 13108\n  s_lshr_b32 s{ct}, s{ct}, 16\n  s_mul_i32 s{nt}, s{ct}, 5\n  s_sub_u32 s{nt}, s{dt}, s{nt}")
def relay_issue(a):
    srd(a, 40, 26, F*D*2); srd(a, 44, 22, D*D*2); srd(a, 48, 24, D*D*2)
    srd_off(a, 52, 12, WF_OFF, WF_BYTES)
    a(f"""  v_lshrrev_b32 v100, 3, v0
  v_and_b32 v101, 7, v0
  v_xor_b32 v101, v101, v100
  v_mul_u32_u24 v100, 1280, v100
  v_lshl_add_u32 v100, v101, 4, v100
  s_add_u32 s61, s2, 256
  s_cmp_lt_u32 s2, 224
  s_cselect_b32 s61, s61, s2
  s_add_u32 s62, s2, 144
  s_cmp_ge_u32 s2, 112
  s_cselect_b32 s62, s62, s2""")
    for t, treg in enumerate((2, 61)):
        div10(a, 63, 64, treg)
        a(f"  s_mul_i32 s65, s63, {32*1280}\n  s_lshl_b32 s66, s64, 7\n  s_add_u32 s65, s65, s66")
        for n in range(4):
            a(f"  s_mov_b32 m0, {IMG + t*4096 + n*1024}\n  s_add_u32 s66, s65, {n*8*1280}\n  buffer_load_dwordx4 v100, s[40:43], s66 offen lds")
        a(f"  s_mul_i32 s{90+2*t}, s63, 5\n  s_lshl_b32 s{91+2*t}, s64, 2")
    for t, treg in enumerate((2, 62)):
        div10(a, 63, 64, treg)
        a(f"  s_mul_i32 s65, s63, {16*1280}\n  s_lshl_b32 s66, s64, 7\n  s_add_u32 s65, s65, s66")
        for pl in range(2):
            for n in range(2):
                a(f"  s_mov_b32 m0, {IMG + (2+t)*4096 + pl*2048 + n*1024}\n  s_add_u32 s66, s65, {n*8*1280}\n  buffer_load_dwordx4 v100, s[{44+4*pl}:{47+4*pl}], s66 offen lds")
        dt_split(a, 65, 66, 63)
        a(f"  s_mul_i32 s65, s65, 440\n  s_mul_i32 s64, s64, 20\n  s_add_u32 s65, s65, s64\n  s_add_u32 s65, s65, s66\n  s_add_u32 s65, s65, 240\n  s_lshl_b32 s{94+t}, s65, 10")
def relay_w2_proc(a):
    a(f"""  v_lshrrev_b32 v121, 4, v0                 ; g
  v_lshlrev_b32 v121, 2, v121
  v_bfe_u32 v122, v0, 2, 2
  v_add_u32 v121, v121, v122                ; row = g*4 + (q>>2)
  v_and_b32 v122, 7, v121                   ; f
  v_bfe_u32 v123, v0, 1, 1
  v_xor_b32 v122, v122, v123
  v_lshlrev_b32 v121, 7, v121
  v_lshl_add_u32 v121, v122, 4, v121
  v_and_b32 v122, 1, v0
  v_lshl_add_u32 v121, v122, 3, v121
  v_add_u32 v121, {IMG}, v121
  v_xor_b32 v122, 32, v121
  v_xor_b32 v123, 64, v121
  v_xor_b32 v124, 0x60, v121
  v_lshlrev_b32 v125, 4, v0                 ; lane*16""")
    for t in range(2):
        R = 128 + 16*t
        for u in range(4):
            a(f"  ds_read_b64_tr_b16 v[{R+4*u}:{R+4*u+1}], v{121+u} offset:{t*4096}\n  ds_read_b64_tr_b16 v[{R+4*u+2}:{R+4*u+3}], v{121+u} offset:{t*4096+2048}")
    for t in range(2):
        R = 128 + 16*t
        for u in range(4):
            a(f"  s_add_u32 s63, s{91+2*t}, {u}")
            dt_split(a, 64, 65, 63)
            a(f"  s_mul_i32 s64, s64, 440\n  s_add_u32 s64, s64, s{90+2*t}\n  s_add_u32 s64, s64, s65\n  s_lshl_b32 s64, s64, 10")
            a(f"  s_waitcnt lgkmcnt({min(15, 14 - 8*t - 2*u)})\n  buffer_store_dwordx4 v[{R+4*u}:{R+4*u+3}], v125, s[52:55], s64 offen sc1")
def relay_c_proc(a):
    a(f"""  v_and_b32 v121, 15, v0                    ; i
  v_lshrrev_b32 v122, 5, v0                 ; g>>1
  v_and_b32 v123, 7, v121
  v_xor_b32 v122, v122, v123
  v_lshlrev_b32 v121, 7, v121
  v_lshl_add_u32 v121, v122, 4, v121
  v_bfe_u32 v122, v0, 4, 1
  v_lshl_add_u32 v121, v122, 3, v121
  v_add_u32 v121, {IMG + 8192}, v121
  v_xor_b32 v122, 32, v121
  v_xor_b32 v123, 64, v121
  v_xor_b32 v124, 0x60, v121""")
    for t in range(2):
        R = 160 + 16*t
        for u in range(4):
            a(f"  ds_read_b64 v[{R+4*u}:{R+4*u+1}], v{121+u} offset:{t*4096}\n  ds_read_b64 v[{R+4*u+2}:{R+4*u+3}], v{121+u} offset:{t*4096+2048}")
    for t in range(2):
        R = 160 + 16*t
        for u in range(4):
            a(f"  s_add_u32 s64, s{94+t}, {u*5120}\n  s_waitcnt lgkmcnt({14 - 8*t - 2*u})\n  buffer_store_dwordx4 v[{R+4*u}:{R+4*u+3}], v125, s[52:55], s64 offen sc1")
def loaders(a, P):
    NT = P.get('nt_k1', '')
    a("K1_ldx:")
    stamp(a, 84, P.get('lst'))
    srd(a, 36, 4, S*D*2)
    a(f"""
  v_lshrrev_b32 v1, 5, v0
  v_lshlrev_b32 v1, 4, v1                   ; (l>>5)*16
  v_bfe_u32 v2, v0, 3, 1
  v_lshl_add_u32 v1, v2, 3, v1              ; + ((l>>3)&1)*8
  v_bfe_u32 v2, v0, 4, 1
  v_add_u32 v1, v1, v2
  s_lshl_b32 s63, s29, 7
  v_add_u32 v1, s63, v1
  v_mul_u32_u24 v1, 1280, v1
  v_and_b32 v2, 7, v0
  v_lshrrev_b32 v3, 4, v0
  v_xor_b32 v2, v2, v3
  v_lshl_add_u32 v4, v2, 4, v1
  v_xor_b32 v2, 4, v2
  v_lshl_add_u32 v5, v2, 4, v1
""")
    def issue_x():
        a("  s_lshl_b32 s63, s60, 7")
        for n in range(16):
            row = (n>>3)*64 + (n&1)*32 + ((n>>1)&3)*2
            a(f"  s_add_u32 m0, s61, {n*1024}\n  s_add_u32 s64, s63, {row*1280}\n  buffer_load_dwordx4 v{4+(n&1)}, s[36:39], s64 offen {NT} lds")
    PROD = P.get('prod')
    tail = lambda vm: a("  s_branch K2_loader" if P.get('fuse') else "  s_branch K1_relay")
    def tailx(vm):
        if P.get('lst'):
            srd_off(a, 48, 12, STAMP_OFF + 0x8000, 0x100000)
            a("  s_mov_b64 exec, 1")
            stamp_store(a, 48, 2, [80,82,84,86,88,90,92,94,96], 20, True, base=0)
        tail(vm)
    if PROD:
        srd(a, 44, 12, 0x100000)
        def hx0(vm): get_tag(a, 23); xs_part1(a)
        def hx1(vm): xs_part2(a, 44, 23, vm)
        hk = {0: hx0, 1: hx1}
        loader_loop(a, 'K1_lx', 16, issue_x, P, tailx, pre=lambda vm: xs_issue(a, 36, 0, vm), hooks=hk)
    else:
        loader_loop(a, 'K1_lx', 16, issue_x, P, tail)
    a("K1_ldb:")
    srd(a, 36, 6, D*D*2); srd(a, 40, 8, D*D*2)
    a(f"""
  v_lshrrev_b32 v1, 3, v0
  s_lshl_b32 s63, s32, 4
  v_add_u32 v1, s63, v1
  v_mul_u32_u24 v1, 1280, v1
  v_and_b32 v2, 7, v0
  v_lshrrev_b32 v3, 4, v0
  v_xor_b32 v2, v2, v3
  v_lshl_add_u32 v4, v2, 4, v1
  v_xor_b32 v2, 4, v2
  v_lshl_add_u32 v5, v2, 4, v1
""")
    def issue_b(nu):
        def f():
            a("  s_lshl_b32 s63, s60, 7")
            for u in range(nu):
                for pl in range(2):
                    for n in range(2):
                        a(f"  s_add_u32 m0, s61, {16384 + (u*2+pl)*2048 + n*1024}\n  s_add_u32 s64, s63, {(u*16+8*n)*1280}\n  buffer_load_dwordx4 v{4+n}, s[{36+4*pl}:{39+4*pl}], s64 offen {NT} lds")
        return f
    def bprod(nch):
        def pre(vm):
            a(f"""  v_lshrrev_b32 v20, 4, v0
  v_min_u32 v20, {nch-1}, v20
  s_mul_i32 s60, s29, {nch}
  s_lshl_b32 s61, s32, 4
  s_add_u32 s60, s60, s61
  v_add_u32 v20, s60, v20                   ; channel
  v_lshlrev_b32 v21, 4, v20
  v_add_u32 v21, {CSS_OFF}, v21
  v_mul_u32_u24 v20, 1280, v20
  v_and_b32 v22, 15, v0
  v_lshl_add_u32 v20, v22, 4, v20""")
            for pl in range(2):
                for n in range(5): a(f"  buffer_load_dwordx4 v[{24+20*pl+4*n}:{27+20*pl+4*n}], v20, s[{36+4*pl}:{39+4*pl}], 0 offen offset:{n*256}")
            vm.add('prod', 10)
        def h0(vm):
            get_tag(a, 23); sum_bf16(a, 24, 20, 64)
        def h1(vm):
            sum_bf16(a, 44, 20, 66)
            red16(a, [64, 66])
            a(f"""  v_mov_b32 v65, v23
  v_mov_b32 v67, v23
  s_mov_b32 exec_lo, 0x00010001
  s_mov_b32 exec_hi, {1 if nch == 3 else 0}
  buffer_store_dwordx4 v[64:67], v21, s[44:47], 0 offen sc1
  s_mov_b64 exec, -1""")
            vm.add('pst')
        hk = {0: h0, 1: h1}; hk.update(RH)
        return dict(pre=pre, hooks=hk) if PROD else {}
    if PROD: srd(a, 44, 12, 0x100000)
    RH = {}
    a("  s_cmp_eq_u32 s31, 1\n  s_cbranch_scc1 K1_ldbY")
    loader_loop(a, 'K1_lbX', 12, issue_b(3), P, tail, **bprod(3))
    a("K1_ldbY:")
    loader_loop(a, 'K1_lbY', 8, issue_b(2), P, tail, **bprod(2))
    a("K1_ldw:")
    srd(a, 36, 10, D*F*2)
    a(f"""
  v_lshrrev_b32 v1, 3, v0
  v_mul_u32_u24 v1, 3072, v1
  s_lshl_b32 s63, s33, 7
  v_add_u32 v1, s63, v1
  v_and_b32 v2, 7, v0
  v_bfe_u32 v3, v0, 4, 1
  v_lshlrev_b32 v3, 1, v3                   ; 2*((l>>4)&1)
  v_xor_b32 v2, v2, v3
  v_lshl_add_u32 v4, v2, 4, v1              ; n even
  v_xor_b32 v2, 4, v2
  v_lshl_add_u32 v5, v2, 4, v1              ; n odd
""")
    def issue_w(nb, fb):
        def f():
            a(f"  s_mul_i32 s63, s60, {64*3072}")
            for b in range(nb):
                for n in range(8):
                    a(f"  s_add_u32 m0, s61, {fb + b*8192 + n*1024}\n  s_add_u32 s64, s63, {8*n*3072 + b*128}\n  buffer_load_dwordx4 v{4+(n&1)}, s[36:39], s64 offen {NT} lds")
        return f
    def wprod(nb):
        def pre(vm):
            a(f"""  v_lshrrev_b32 v20, 3, v0
  s_mul_i32 s60, s29, 40
  v_add_u32 v20, s60, v20                   ; k row
  v_mul_u32_u24 v20, 3072, v20
  s_lshl_b32 s60, s33, 7
  v_add_u32 v20, s60, v20
  v_and_b32 v22, 7, v0
  v_lshl_add_u32 v20, v22, 4, v20
  v_lshlrev_b32 v21, 2, v22
  v_bfe_u32 v22, v0, 4, 1
  v_lshl_add_u32 v21, v22, 1, v21
  v_lshrrev_b32 v22, 5, v0
  v_add_u32 v21, v21, v22
  v_lshlrev_b32 v21, 4, v21
  s_lshl_b32 s60, s33, 4
  s_add_u32 s60, s60, s29
  s_lshl_b32 s60, s60, 9
  s_add_u32 s60, s60, {CSF_OFF}
  v_add_u32 v21, s60, v21
  v_add_u32 v19, {3*8*3072}, v20""")
            for b in range(nb):
                for n in range(5):
                    va, off = (20, n*0) , 0
                    a(f"  s_movk_i32 s61, {n*8*3}\n  s_lshl_b32 s61, s61, 10\n  buffer_load_dwordx4 v[{24+20*b+4*n}:{27+20*b+4*n}], v20, s[36:39], s61 offen offset:{b*128}")
            vm.add('prod', 5*nb)
        def blk(vm, b):
            A = 64; src = 24 + 20*b
            for n in range(5):
                for i in range(4):
                    r = src + 4*n + i
                    if n == 0: a(f"  v_lshlrev_b32 v{A+2*i}, 16, v{r}\n  v_and_b32 v{A+2*i+1}, 0xffff0000, v{r}")
                    else: a(f"  v_lshlrev_b32 v72, 16, v{r}\n  v_and_b32 v73, 0xffff0000, v{r}\n  v_add_f32 v{A+2*i}, v{A+2*i}, v72\n  v_add_f32 v{A+2*i+1}, v{A+2*i+1}, v73")
            a("  s_nop 1")
            for i in range(4): a(f"  v_permlane16_swap_b32 v{A+i}, v{A+i+4}")
            a("  s_nop 1")
            for i in range(4): a(f"  v_add_f32 v{A+i}, v{A+i}, v{A+i+4}")
            a("  s_nop 1")
            for i in range(2): a(f"  v_permlane32_swap_b32 v{A+i}, v{A+i+2}")
            a("  s_nop 1")
            for i in range(2): a(f"  v_add_f32 v{A+i}, v{A+i}, v{A+i+2}")
            a("  s_nop 1")
            for i in range(2): a(f"  v_add_f32_dpp v{76+2*i}, v{A+i}, v{A+i} row_ror:8 {DPP}")
            a(f"""  v_mov_b32 v77, v23
  v_mov_b32 v79, v23
  s_mov_b32 exec_lo, 0x00ff00ff
  s_mov_b32 exec_hi, 0x00ff00ff
  s_movk_i32 s63, {b*8192}
  buffer_store_dwordx4 v[76:79], v21, s[44:47], s63 offen sc1
  s_mov_b64 exec, -1
  s_nop 1""")
            vm.add('pst')
        def h0(vm): get_tag(a, 23); blk(vm, 0)
        def h1(vm): blk(vm, 1)
        return dict(pre=pre, hooks={0: h0, 1: h1} if nb == 2 else {0: h0}) if PROD else {}
    if PROD: srd(a, 44, 12, 0x100000)
    a("  s_cmp_eq_u32 s31, 1\n  s_cbranch_scc1 K1_ldwY")
    loader_loop(a, 'K1_lwX', 8, issue_w(1, 28672), P, tail, **wprod(1))
    a("K1_ldwY:")
    loader_loop(a, 'K1_lwY', 16, issue_w(2, 24576), P, tail, **wprod(2))
    a("K1_relay:")
    a("  s_endpgm")
VX0, VX1, VB0, VB1, VW = 2, 3, 4, 5, 6
ACC = 12
class Role:
    def __init__(self, isP):
        self.isP = isP
        self.nu = 1 if isP else 2
        self.AR = [ACC + 32*u for u in range(self.nu)]
        self.AI = [ACC + 32*u + 16 for u in range(self.nu)]
        self.AF = ACC + 32
        nacc = 96 if isP else 64
        self.nacc = nacc
        self.SET = ACC + nacc
        self.setsz = 40 if isP else 32
        self.free = self.SET
def main_loop(a, R, P):
    def regs(h):
        b = R.SET + h*R.setsz
        X = [b + 4*jm for jm in range(4)]
        Bs = [(b + 16 + 8*u, b + 20 + 8*u) for u in range(R.nu)]
        W = [b + 24 + 4*u for u in range(4)] if R.isP else []
        return X, Bs, W
    def reads(h):
        X, Bs, W = regs(h)
        vx, vb = (VX0, VB0) if h == 0 else (VX1, VB1)
        L = []
        L.append(f"  ds_read_b128 v[{X[0]}:{X[0]+3}], v{vx}")
        for u,(br,bi) in enumerate(Bs):
            L.append(f"  ds_read_b128 v[{br}:{br+3}], v{vb} offset:{u*4096}")
            L.append(f"  ds_read_b128 v[{bi}:{bi+3}], v{vb} offset:{u*4096+2048}")
        for jm in range(1,4): L.append(f"  ds_read_b128 v[{X[jm]}:{X[jm]+3}], v{vx} offset:{jm*2048}")
        for u,w in enumerate(W):
            L.append(f"  ds_read_b64_tr_b16 v[{w}:{w+1}], v{VW+u} offset:{h*4096}")
            L.append(f"  ds_read_b64_tr_b16 v[{w+2}:{w+3}], v{VW+u} offset:{h*4096+512}")
        return L
    def mfmas(h):
        X, Bs, W = regs(h)
        L = []
        for jm in range(4):
            for u,(br,bi) in enumerate(Bs):
                c = R.AR[u] + 4*jm; L.append(f"  v_mfma_f32_16x16x32_bf16 v[{c}:{c+3}], v[{X[jm]}:{X[jm]+3}], v[{br}:{br+3}], v[{c}:{c+3}]")
                c = R.AI[u] + 4*jm; L.append(f"  v_mfma_f32_16x16x32_bf16 v[{c}:{c+3}], v[{X[jm]}:{X[jm]+3}], v[{bi}:{bi+3}], v[{c}:{c+3}]")
        for u,w in enumerate(W):
            for jm in range(4):
                c = R.AF + 16*u + 4*jm; L.append(f"  v_mfma_f32_16x16x32_bf16 v[{c}:{c+3}], v[{w}:{w+3}], v[{X[jm]}:{X[jm]+3}], v[{c}:{c+3}]")
        return L
    def bumps(s):
        d = RING if (s % 3) != 2 else -2*RING
        regs_ = [VX0, VX1, VB0, VB1] + ([VW+u for u in range(4)] if R.isP else [])
        if d > 0: return [f"  v_add_u32 v{r}, {d}, v{r}" for r in regs_]
        return [f"  v_subrev_u32 v{r}, {-d}, v{r}" for r in regs_]
    ST = P.get('stamps')
    if P.get('pre0'): a("  s_barrier")
    a("  s_barrier")
    if ST: stamp(a, 84, ST)
    if P.get('cyc'): a("  s_memtime s[74:75]")
    for r in reads(0): a(r)
    for s in range(10):
        a("  s_waitcnt lgkmcnt(0)")
        interleave(a, mfmas(0), reads(1) + (bumps(s) if s < 9 else []))
        a("  s_waitcnt lgkmcnt(0)")
        if s < 9:
            a("  s_barrier")
            interleave(a, mfmas(1), reads(0))
        else:
            if P.get('fuse'): a("  s_barrier")
            for m in mfmas(1): a(m)
def ffn_epilogue(a, R, P, T):
    RQ = T
    C4 = T+8
    B4 = T+24
    TM = T+40
    a(f"""
  v_and_b32 v1, 15, v0
  v_lshlrev_b32 v1, 4, v1                   ; i*16
  s_lshl_b32 s60, s66, 8                    ; rh*256
  v_add_u32 v1, s60, v1
  v_add_u32 v1, {RSF}, v1
  ds_read_b128 v[{RQ}:{RQ+3}], v1
  ds_read_b128 v[{RQ+4}:{RQ+7}], v1 offset:{QF-RSF}
  v_lshrrev_b32 v1, 4, v0
  v_lshlrev_b32 v1, 4, v1                   ; g*16
  v_add_u32 v1, s64, v1
  v_add_u32 v1, {CS1}, v1
""")
    for u in range(4):
        a(f"  ds_read_b128 v[{C4+4*u}:{C4+4*u+3}], v1 offset:{u*64}")
        a(f"  ds_read_b128 v[{B4+4*u}:{B4+4*u+3}], v1 offset:{B1T-CS1+u*64}")
    a("  s_waitcnt lgkmcnt(0)")
    for uu in range(2):
        for jm in range(4):
            O = TM + 8 + 4*(jm & 1)
            for ui in range(2):
                u = uu*2 + ui
                for pr in range(2):
                    acc = R.AF + 16*u + 4*jm + 2*pr
                    t = TM + 2*pr; m = TM + 4 + 2*pr
                    q = (RQ+4 + (jm & ~1), 'lh'[jm & 1], 'b'); rs = (RQ + (jm & ~1), 'lh'[jm & 1])
                    pk(a, 'fma', t, q, C4+4*u+2*pr, B4+4*u+2*pr)
                    pk(a, 'fma', t, rs, acc, t)
                for pr in range(2):
                    t = TM + 2*pr; m = TM + 4 + 2*pr
                    a(f"  v_max_f32 v{m}, 0, v{t}\n  v_max_f32 v{m+1}, 0, v{t+1}")
                for pr in range(2):
                    t = TM + 2*pr; m = TM + 4 + 2*pr
                    pk(a, 'mul', t, t, m)
                for pr in range(2):
                    t = TM + 2*pr
                    a(f"  v_cvt_pk_bf16_f32 v{O+2*ui+pr}, v{t}, v{t+1}")
            a(f"  s_add_u32 s60, s65, {jm*88*1024 + uu*1024}")
            a(f"  buffer_store_dwordx4 v[{O}:{O+3}], v10, s[40:43], s60 offen {P.get('hf_f', 'sc1')}")
def ssm_phase1(a, R, P, T):
    nu = R.nu
    RS = T; Q = T+16
    M = {}
    b = T + 32
    for u in range(nu):
        M[u] = dict(LA=b, L16=b+4, C2=b+6, CS=b+8, LS=b+10, EA=b+12, PP=b+14, T0=b+16, T1=b+20, E=b+24)
        b += 26
    M['end'] = b
    a(f"""
  v_lshrrev_b32 v1, 4, v0
  s_lshl_b32 s60, s66, 2
  v_add_u32 v1, s60, v1                     ; sigma
  v_lshlrev_b32 v11, 6, v1                  ; sigma*64
  v_add_u32 v11, {RSA}, v11
""")
    for i in range(4):
        a(f"  ds_read_b128 v[{RS+4*i}:{RS+4*i+3}], v11 offset:{16*i}")
        a(f"  ds_read_b128 v[{Q+4*i}:{Q+4*i+3}], v11 offset:{QA-RSA+16*i}")
    a(f"""
  v_and_b32 v11, 15, v0                     ; p
  s_lshl_b32 s60, s67, 4
  v_add_u32 v11, s60, v11                   ; slot*16+p
  v_lshlrev_b32 v9, 5, v11
  v_add_u32 v9, {LAM}, v9
  v_lshlrev_b32 v11, 3, v11                 ; (slot*16+p)*8
  v_add_u32 v11, {CSL}, v11
  v_lshlrev_b32 v8, 7, v1                   ; sigma*128
  v_and_b32 v7, 15, v0
  v_lshl_add_u32 v8, v7, 3, v8              ; sigma*128+p*8
  s_mul_i32 s60, s67, 1024
  v_add_u32 v7, s60, v8
  v_add_u32 v7, {LST}, v7
  s_mul_i32 s60, s67, 1920
  v_add_u32 v8, s60, v8
  v_add_u32 v8, {EL}, v8
""")
    for u in range(nu):
        m = M[u]
        a(f"  ds_read_b128 v[{m['LA']}:{m['LA']+3}], v9 offset:{u*512}")
        a(f"  ds_read_b128 v[{m['L16']}:{m['L16']+3}], v9 offset:{u*512+16}")
        a(f"  ds_read_b64 v[{m['CS']}:{m['CS']+1}], v11 offset:{u*128}")
        a(f"  ds_read_b64 v[{m['LS']}:{m['LS']+1}], v7 offset:{u*1024}")
    a("  s_waitcnt lgkmcnt(0)")
    for n in range(8):
        for u in range(nu):
            m = M[u]
            for (A, md) in ((R.AR[u], 'l'), (R.AI[u], 'h')):
                pk(a, 'mul', A+2*n, RS+2*n, A+2*n)
        for u in range(nu):
            m = M[u]
            for (A, md) in ((R.AR[u], 'l'), (R.AI[u], 'h')):
                pk(a, 'fma', A+2*n, (Q+2*n, 'n', 'b'), (m['CS'], md), A+2*n)
    cur = {u: (R.AR[u], R.AI[u]) for u in range(nu)}
    for n in range(1, 8):
        for u in range(nu):
            m = M[u]; d = m['T0'] if n & 1 else m['T1']
            hr, hi = cur[u]
            pk(a, 'fma', d, (m['LA'], 'l'), hr, R.AR[u]+2*n)
            pk(a, 'fma', d+2, (m['LA'], 'l'), hi, R.AI[u]+2*n)
        for u in range(nu):
            m = M[u]; d = m['T0'] if n & 1 else m['T1']
            hr, hi = cur[u]
            pk(a, 'fma', d, (m['LA'], 'h', 'b'), hi, d)
            pk(a, 'fma', d+2, (m['LA'], 'h'), hr, d+2)
            cur[u] = (d, d+2)
    for u in range(nu):
        m = M[u]; hr, hi = cur[u]
        ea, e = m['EA'], m['E']; l8r, l8i = m['LA']+2, m['LA']+3
        a(f"""  v_mov_b32 v{ea}, v{hr}
  v_mov_b32 v{ea+1}, v{hi}
  v_fma_f32 v{e}, v{l8r}, v{hr}, v{hr+1}
  v_fma_f32 v{e+1}, v{l8r}, v{hi}, v{hi+1}
  v_fma_f32 v{e}, -v{l8i}, v{hi}, v{e}
  v_fma_f32 v{e+1}, v{l8i}, v{hr}, v{e+1}
  ds_write_b64 v8, v[{e}:{e+1}] offset:{u*1920 + 7*128}""")
    a(f"""
  v_mov_b32 v9, {F_E}
  s_lshl_b32 s60, s67, 2
  v_add_u32 v9, s60, v9
  s_cmp_eq_u32 s66, 0
  s_cbranch_scc0 K1_e1_{int(R.isP)}
  v_mov_b32 v7, 1
  s_waitcnt lgkmcnt(0)
  ds_write_b32 v9, v7
  s_branch K1_e2_{int(R.isP)}
K1_e1_{int(R.isP)}:""")
    poll_lds(a, f'K1_ep_{int(R.isP)}', 9, 7, 0)
    a(f"K1_e2_{int(R.isP)}:")
    EN = M['end']
    for u in range(nu):
        for k in range(7): a(f"  ds_read_b64 v[{EN+14*u+2*k}:{EN+14*u+2*k+1}], v8 offset:{u*1920 + k*128}")
    a("  s_waitcnt lgkmcnt(0)")
    curp = {u: EN+14*u for u in range(nu)}
    for k in range(1, 7):
        for u in range(nu):
            m = M[u]; d = m['PP'] if (k == 6) else (m['T0'] if k & 1 else m['T1'])
            pk(a, 'fma', d, (m['L16'], 'l'), curp[u], EN+14*u+2*k)
        for u in range(nu):
            m = M[u]; d = m['PP'] if (k == 6) else (m['T0'] if k & 1 else m['T1'])
            pk(a, 'fma', d, (m['L16'], 'h'), (curp[u], 's', 'l'), d)
            curp[u] = d
    a(f"""
  s_cmp_eq_u32 s66, 1
  s_cbranch_scc0 K1_nopub_{int(R.isP)}
  v_mov_b32 v9, {F_TAG}
  ds_read_b32 v7, v9
  v_and_b32 v1, 15, v0
  s_add_u32 s60, s32, s67
  s_lshl_b32 s60, s60, 4
  s_mul_i32 s61, s29, 640
  s_add_u32 s60, s60, s61
  v_add_u32 v1, s60, v1
  v_lshlrev_b32 v1, 4, v1
  v_add_u32 v1, {EC_OFF}, v1
  s_waitcnt lgkmcnt(0)
""")
    for u in range(nu):
        m = M[u]; t = m['T0']
        pk(a, 'fma', m['T1'], (m['L16'], 'l'), m['PP'], m['E'])
        pk(a, 'fma', m['T1'], (m['L16'], 'h'), (m['PP'], 's', 'l'), m['T1'])
        a(f"  v_mov_b32 v{t}, v{m['T1']}\n  v_mov_b32 v{t+1}, v7\n  v_mov_b32 v{t+2}, v{m['T1']+1}\n  v_mov_b32 v{t+3}, v7")
    a("  s_mov_b32 exec_lo, 0\n  s_mov_b32 exec_hi, 0xffff0000")
    for u in range(nu):
        t = M[u]['T0']
        a(f"  buffer_store_dwordx4 v[{t}:{t+3}], v1, s[44:47], 0 offen offset:{u*256} sc1")
    a(f"  s_mov_b64 exec, -1\nK1_nopub_{int(R.isP)}:")
    return M
def ssm_phase2(a, R, P, M):
    nu = R.nu
    a(f"  v_mov_b32 v9, {F_HIN}")
    poll_lds(a, f'K1_hp_{int(R.isP)}', 9, 7, 0)
    for u in range(nu):
        m = M[u]
        a(f"  ds_read_b64 v[{m['T0']}:{m['T0']+1}], v11 offset:{HIN - CSL + u*128}")
    a("  s_waitcnt lgkmcnt(0)")
    for u in range(nu):
        m = M[u]; H = m['T0']; Sx = m['T0']+2; SB = m['T1']
        pk(a, 'fma', Sx, (m['LS'], 'l'), H, m['PP'])
        pk(a, 'fma', Sx, (m['LS'], 'h'), (H, 's', 'l'), Sx)
        pk(a, 'fma', SB, (m['LA']+2, 'l'), Sx, m['EA'])
        pk(a, 'fma', SB, (m['LA']+2, 'h'), (Sx, 's', 'l'), SB)
        a(f"  v_mov_b32 v{H}, v{Sx}\n  v_mov_b32 v{H+1}, v{SB}\n  v_mov_b32 v{SB+2}, v{Sx+1}\n  v_mov_b32 v{SB+3}, v{SB+1}")
    cur = {u: (M[u]['T0'], M[u]['T1']+2) for u in range(nu)}
    for n in range(8):
        for u in range(nu):
            m = M[u]; hr, hi = cur[u]
            pk(a, 'fma', R.AR[u]+2*n, (m['LA'], 'l'), hr, R.AR[u]+2*n)
            pk(a, 'fma', R.AI[u]+2*n, (m['LA'], 'l'), hi, R.AI[u]+2*n)
        for u in range(nu):
            m = M[u]; hr, hi = cur[u]
            pk(a, 'fma', R.AR[u]+2*n, (m['LA'], 'h', 'b'), hi, R.AR[u]+2*n)
            pk(a, 'fma', R.AI[u]+2*n, (m['LA'], 'h'), hr, R.AI[u]+2*n)
            cur[u] = (R.AR[u]+2*n, R.AI[u]+2*n)
    a(f"""
  v_and_b32 v1, 15, v0
  v_lshlrev_b32 v1, 5, v1
  v_lshrrev_b32 v7, 4, v0
  v_lshl_add_u32 v1, v7, 3, v1              ; p*32+g*8
  s_lshl_b32 s60, s28, 12
  s_add_u32 s60, s60, {IMG}
  v_add_u32 v1, s60, v1
  v_lshlrev_b32 v7, 3, v0
  v_add_u32 v7, s60, v7
""")
    for u in range(nu):
        m = M[u]; C2 = m['L16']+2; TT = M['end']
        for jm in range(4):
            for pr in range(2):
                n = 2*jm+pr; t = TT + 8*(jm&1) + 2*pr; hr, hi = R.AR[u]+2*n, R.AI[u]+2*n
                pk(a, 'mul', t, (C2, 'l'), hr)
                pk(a, 'mul', t+4, (C2, 'l', 'b'), hi)
            for pr in range(2):
                n = 2*jm+pr; t = TT + 8*(jm&1) + 2*pr; hr, hi = R.AR[u]+2*n, R.AI[u]+2*n
                pk(a, 'fma', t, (C2, 'h', 'b'), hi, t)
                pk(a, 'fma', t+4, (C2, 'h', 'b'), hr, t+4)
            t = TT + 8*(jm&1); o = TT + 16 + 4*(jm&1)
            a(f"  v_cvt_pk_bf16_f32 v{o}, v{t}, v{t+1}\n  v_cvt_pk_bf16_f32 v{o+1}, v{t+2}, v{t+3}")
            a(f"  v_cvt_pk_bf16_f32 v{o+2}, v{t+4}, v{t+5}\n  v_cvt_pk_bf16_f32 v{o+3}, v{t+6}, v{t+7}")
            a(f"  ds_write_b64 v1, v[{o}:{o+1}] offset:{jm*1024}\n  ds_write_b64 v1, v[{o+2}:{o+3}] offset:{jm*1024+512}")
        FR = M['end'] + 24
        for jm in range(4):
            a(f"  ds_read_b64_tr_b16 v[{FR+4*jm}:{FR+4*jm+1}], v7 offset:{jm*1024}\n  ds_read_b64_tr_b16 v[{FR+4*jm+2}:{FR+4*jm+3}], v7 offset:{jm*1024+512}")
        for jm in range(4):
            a(f"  s_waitcnt lgkmcnt({6-2*jm})")
            a(f"  s_add_u32 s60, s68, {jm*88*1024 + u*1024}")
            a(f"  buffer_store_dwordx4 v[{FR+4*jm}:{FR+4*jm+3}], v10, s[40:43], s60 offen {P.get('hf_s', 'sc1')}")
def compute(a, P):
    ST = P.get('stamps')
    a("K1_compute:")
    srd_off(a, 40, 12, HF_OFF, HF_BYTES)
    srd(a, 44, 12, 0x100000)
    if ST: srd_off(a, 48, 12, STAMP_OFF, 0x100000)
    a(f"""
  s_and_b32 s66, s28, 1                     ; rh
  s_lshr_b32 s69, s28, 1                    ; col
  v_and_b32 v1, 15, v0
  v_lshlrev_b32 v1, 7, v1                   ; row*128
  v_lshrrev_b32 v8, 4, v0                   ; g
  v_bfe_u32 v9, v0, 1, 3
  v_xor_b32 v9, v8, v9
  v_lshl_add_u32 v1, v9, 4, v1              ; lanepart
  s_lshl_b32 s60, s66, 13
  v_add_u32 v{VX0}, s60, v1
  v_xor_b32 v{VX1}, 64, v{VX0}
  s_lshl_b32 s60, s29, 1
  s_add_u32 s60, s60, s66                   ; rt
  s_mul_i32 s60, s60, {4*88*1024}
  v_lshlrev_b32 v10, 4, v0
  v_add_u32 v10, s60, v10
  s_cmp_eq_u32 s31, 1
  s_cselect_b32 s67, s69, s69
  s_lshl_b32 s60, s67, 12
  s_add_u32 s60, s60, 16384
  v_add_u32 v{VB0}, s60, v1
  v_xor_b32 v{VB1}, 64, v{VB0}
  s_add_u32 s68, s32, s67
  s_add_u32 s68, s68, 48
  s_lshl_b32 s68, s68, 10                   ; (48+cu)*1024
  s_cmp_eq_u32 s31, 0
  s_cselect_b32 s60, s69, 0
  s_cmp_lg_u32 s60, 0
  s_cbranch_scc1 K1_Q
""")
    R = Role(True)
    a(f"""
  s_mul_i32 s64, s69, s31
  s_add_u32 s65, s33, s64
  s_lshl_b32 s65, s65, 11
  s_lshl_b32 s60, s64, 13
  s_movk_i32 s61, 28672
  s_cmp_eq_u32 s31, 1
  s_cselect_b32 s61, 24576, s61
  s_add_u32 s60, s60, s61                   ; FB
  s_lshl_b32 s64, s64, 8
  v_and_b32 v1, 15, v0                      ; q
  v_lshrrev_b32 v9, 2, v1
  v_lshl_add_u32 v9, v8, 3, v9              ; g*8+(q>>2)
  v_lshlrev_b32 v9, 7, v9
  v_and_b32 v7, 3, v1
  v_lshl_add_u32 v9, v7, 3, v9              ; +(q&3)*8
  v_bfe_u32 v7, v1, 3, 1
  v_and_b32 v1, 1, v8
  v_lshl_add_u32 v7, v1, 1, v7              ; h
  v_lshl_add_u32 v9, v7, 5, v9
  v_add_u32 v{VW}, s60, v9
  v_xor_b32 v{VW+1}, 32, v{VW}
  v_xor_b32 v{VW+2}, 64, v{VW}
  v_xor_b32 v{VW+3}, 96, v{VW}
""")
    for role in (True, False):
        R = Role(role)
        if not role: a("K1_Q:")
        if P.get('touch'): P['fuse'].touch(a, role)
        for r in range(R.nacc): a(f"  v_mov_b32 v{ACC+r}, 0")
        main_loop(a, R, P)
        if ST: stamp(a, 86, ST)
        if P.get('cyc'): a("  s_memtime s[76:77]\n  s_waitcnt lgkmcnt(0)\n  s_sub_u32 s76, s76, s74")
        a(f"  v_mov_b32 v9, {F_TAB}")
        poll_lds(a, f'K1_tp_{int(role)}', 9, 7, 0)
        if ST: stamp(a, 88, ST)
        a("  s_nop 7")
        T = R.SET
        if role and P.get('ffn_first'):
            ffn_epilogue(a, R, P, T + 32 + 26*R.nu)
            if ST: stamp(a, 90, ST)
            M = ssm_phase1(a, R, P, T)
            assert M['end'] == T + 32 + 26*R.nu
        else:
            M = ssm_phase1(a, R, P, T)
            if ST: stamp(a, 90, ST)
            if role: ffn_epilogue(a, R, P, M['end'])
        if P.get('fuse'): P['fuse'].flagF(a, role)
        if ST: stamp(a, 92, ST)
        ssm_phase2(a, R, P, M)
        if P.get('p2flag'): a(f"  s_lshl_b32 s60, s28, 2\n  s_add_u32 s60, s60, {F_P2}\n  v_mov_b32 v9, s60\n  v_mov_b32 v7, 1\n  ds_write_b32 v9, v7")
        if ST: stamp(a, 94, ST)
        if P.get('fuse'):
            if role: a("  s_branch K2_compute")
            continue
        a("  s_waitcnt vmcnt(0)")
        if ST:
            stamp(a, 96, ST)
            a(f"  s_cmp_lg_u32 s28, {P.get('stamp_wave',0)}\n  s_cbranch_scc1 K1_end\n  s_mov_b64 exec, 1")
            stamp_store(a, 48, 2, [80,84,86,88,90,92,94,76 if P.get('cyc') else 96], 20, ST, base=0)
        a("  s_endpgm")
    if P.get('fuse'): P['fuse'].compute(a)
GP = [{}]
def BAR(a, n=[0]):
    n[0] += 1
    a(f"  s_cmp_eq_u32 s70, 0\n  s_cbranch_scc1 K1_nb{n[0]}")
    tick(a, GP[0], None)
    a("  s_barrier")
    tick(a, GP[0], None)
    a(f"  s_sub_u32 s70, s70, 1\nK1_nb{n[0]}:")
def cmul(a, dr, di, ar, ai, br, bi, t):
    a(f"  v_mul_f32 v{t}, v{ai}, v{bi}\n  v_fma_f32 v{t}, v{ar}, v{br}, -v{t}\n  v_mul_f32 v{di}, v{ar}, v{bi}\n  v_fma_f32 v{di}, v{ai}, v{br}, v{di}\n  v_mov_b32 v{dr}, v{t}")
def csq(a, dr, di, ar, ai):
    a(f"  v_mul_f32 v{di}, v{ar}, v{ai}\n  v_mul_f32 v{dr}, v{ai}, v{ai}\n  v_fma_f32 v{dr}, v{ar}, v{ar}, -v{dr}\n  v_add_f32 v{di}, v{di}, v{di}")
def sync(a, P):
    ST = P.get('stamps'); LIM = P.get('poll_limit', 1 << 16)
    GP[0] = P
    a(f"K1_sync:\n  s_mov_b32 s97, 0\n  s_mov_b32 s70, {10 + (1 if P.get('pre0') else 0) + (1 if P.get('fuse') else 0)}")
    srd(a, 36, 12, 0x100000)
    srd(a, 40, 16, D*2); srd(a, 44, 18, D*2); srd(a, 48, 20, D*2); srd(a, 52, 14, F*2)
    if ST: srd_off(a, 56, 12, STAMP_OFF, 0x100000)
    a(f"""
  v_mov_b32 v1, 0
  buffer_load_dword v2, v1, s[36:39], 0 offen {'' if P.get('ep_plain') else 'sc1'}
  s_lshl_b32 s60, s32, 4
  v_add_u32 v3, s60, v0
  v_min_u32 v3, 639, v3
  v_lshlrev_b32 v4, 1, v3
  buffer_load_ushort v5, v4, s[40:43], 0 offen
  buffer_load_ushort v6, v4, s[44:47], 0 offen
  buffer_load_ushort v7, v4, s[48:51], 0 offen
  s_lshl_b32 s60, s33, 7
  v_lshlrev_b32 v4, 2, v0
  v_add_u32 v4, s60, v4
  v_min_u32 v4, {F*2-4}, v4
  buffer_load_dword v8, v4, s[52:55], 0 offen
  v_mov_b32 v10, 0
  v_mov_b32 v11, 0
  v_lshlrev_b32 v13, 3, v0
  v_add_u32 v12, {FL}, v13
  s_mov_b64 exec, 0xffff
  ds_write_b64 v12, v[10:11]
  s_mov_b64 exec, -1
  v_add_u32 v12, {EL}, v13
""")
    for sl in range(3):
        a(f"  ds_write_b64 v12, v[10:11] offset:{sl*1920}\n  ds_write_b64 v12, v[10:11] offset:{sl*1920+384}")
    if P.get('prod'):
        srd(a, 76, 4, S*D*2)
        xs_issue(a, 76, 1)
    a(f"  s_waitcnt vmcnt({9 if P.get('prod') else 4})")
    a(f"""
  v_readfirstlane_b32 s71, v2
  s_mul_i32 s72, s71, {TAG_MUL}
  s_add_u32 s72, s72, {TAG_ADD}             ; tag
  v_mov_b32 v9, s72
  v_mov_b32 v12, {F_TAG}
  s_waitcnt lgkmcnt(0)
  ds_write_b32 v12, v9
  s_waitcnt lgkmcnt(0)
""")
    BAR(a)
    if P.get('prod'):
        a("  s_waitcnt vmcnt(0)\n  v_mov_b32 v23, s72")
        xs_part1(a)
        if not P.get('pre0'): BAR(a)
        xs_part2(a, 36, 23)
        BAR(a)
        if P.get('relay'): relay_issue(a)
    if not P.get('prod'): a("  s_waitcnt vmcnt(0)")
    a(f"""
  v_lshlrev_b32 v5, 16, v5                  ; lre
  v_lshlrev_b32 v6, 16, v6                  ; lim
  v_lshlrev_b32 v7, 16, v7
  v_mul_f32 v7, 0x3fb8aa3b, v7
  v_exp_f32 v7, v7
  s_nop 0
""")
    bfround(a, 7)
    a(f"""
  v_mul_f32 v12, v7, v5
  v_mul_f32 v13, v7, v6
  v_mul_f32 v12, 0x3fb8aa3b, v12
  v_exp_f32 v12, v12
  v_mul_f32 v13, 0.15915494, v13
  v_sin_f32 v14, v13
  v_cos_f32 v15, v13
  s_nop 0
  v_mul_f32 v16, v12, v15                   ; a
  v_mul_f32 v17, v12, v14                   ; b
  v_subrev_f32 v12, 1.0, v16
  v_mul_f32 v13, v5, v5
  v_fmac_f32 v13, v6, v6
  v_rcp_f32 v13, v13
  v_mul_f32 v14, v12, v5
  v_fmac_f32 v14, v17, v6
  v_mul_f32 v15, v17, v5
  v_fma_f32 v15, -v12, v6, v15
  v_add_f32 v13, v13, v13
  v_mul_f32 v22, v14, v13                   ; c2r
  v_mul_f32 v23, v15, v13                   ; c2i
""")
    csq(a, 24, 25, 16, 17); csq(a, 26, 27, 24, 25); csq(a, 18, 19, 26, 27); csq(a, 20, 21, 18, 19)
    BAR(a)
    csq(a, 28, 29, 20, 21); csq(a, 30, 31, 28, 29); csq(a, 32, 33, 30, 31)
    a(f"""
  v_lshlrev_b32 v12, 5, v0
  v_add_u32 v12, {LAM}, v12
  v_min_u32 v12, {LAM+47*32}, v12
  s_mov_b32 exec_hi, 0xffff
  ds_write_b128 v12, v[16:19]
  ds_write_b128 v12, v[20:23] offset:16
  v_lshrrev_b32 v12, 4, v0
  v_lshlrev_b32 v12, 10, v12
  v_and_b32 v13, 15, v0
  v_lshl_add_u32 v12, v13, 3, v12
  v_add_u32 v12, {LST}, v12
  v_mov_b32 v34, 1.0
  v_mov_b32 v35, 0
  ds_write_b64 v12, v[34:35]
  ds_write_b64 v12, v[20:21] offset:128
  ds_write_b64 v12, v[28:29] offset:256
  ds_write_b64 v12, v[30:31] offset:512
""")
    cmul(a, 34, 35, 28, 29, 20, 21, 38)
    a("  ds_write_b64 v12, v[34:35] offset:384")
    cmul(a, 36, 37, 30, 31, 20, 21, 38)
    a("  ds_write_b64 v12, v[36:37] offset:640")
    cmul(a, 36, 37, 30, 31, 28, 29, 38)
    a("  ds_write_b64 v12, v[36:37] offset:768")
    cmul(a, 36, 37, 30, 31, 34, 35, 38)
    a("  ds_write_b64 v12, v[36:37] offset:896\n  s_mov_b64 exec, -1")
    a(f"""
  v_lshlrev_b32 v34, 16, v8
  v_and_b32 v35, 0xffff0000, v8
  v_lshlrev_b32 v12, 3, v0
  v_add_u32 v12, {B1T}, v12
  ds_write_b64 v12, v[34:35]
""")
    BAR(a)
    G = 40
    a(f"""
  s_mov_b32 s73, {LIM}
  s_lshl_b32 s60, s29, 11                   ; c*128*16
  v_lshlrev_b32 v12, 4, v0
  v_add_u32 v13, s60, v12
  v_add_u32 v13, {XS_OFF}, v13
  v_lshlrev_b32 v14, 4, v3
  v_add_u32 v14, {CSS_OFF}, v14
  v_and_b32 v15, 31, v0
  v_lshlrev_b32 v15, 4, v15
  v_lshrrev_b32 v34, 5, v0
  v_lshl_add_u32 v15, v34, 9, v15           ; pair*16 + (l>>5)*512
  s_lshl_b32 s60, s33, 13
  v_add_u32 v15, s60, v15
  v_add_u32 v15, {CSF_OFF}, v15
  v_add_u32 v39, 4096, v15
  s_movk_i32 s74, 0
  s_cmp_eq_u32 s31, 1
  s_cselect_b32 s74, 8192, 0
""")
    def gather_issue():
        a(f"""  buffer_load_dwordx4 v[{G}:{G+3}], v13, s[36:39], 0 offen sc1
  buffer_load_dwordx4 v[{G+4}:{G+7}], v13, s[36:39], 0 offen offset:1024 sc1
  buffer_load_dwordx4 v[{G+8}:{G+11}], v14, s[36:39], 0 offen sc1""")
        for b in range(2):
            for k in range(8):
                r = G + 12 + (b*8+k)*4
                va = 15 if k < 4 else 39
                a(f"  buffer_load_dwordx4 v[{r}:{r+3}], v{va}, s[36:39], {'0' if b == 0 else 's74'} offen offset:{(k&3)*1024} sc1")
    if P.get('relay') and P.get('g_late'):
        GL = P['g_late']
        BAR(a)
        if GL >= 3: BAR(a)
        a("  s_waitcnt vmcnt(0)")
        gather_issue()
        relay_w2_proc(a)
        BAR(a)
        relay_c_proc(a)
        BAR(a)
        if GL in (2, 4): BAR(a)
        a("  s_waitcnt vmcnt(16)\n  s_branch K1_gchk")
    elif P.get('relay'):
        gather_issue()
        BAR(a)
        a("  s_waitcnt vmcnt(19)")
        relay_w2_proc(a)
        BAR(a)
        relay_c_proc(a)
        BAR(a)
        a("  s_waitcnt vmcnt(16)\n  s_branch K1_gchk")
    a("K1_gather:")
    gather_issue()
    BAR(a); BAR(a)
    a("  s_waitcnt vmcnt(0)\nK1_gchk:\n  v_mov_b32 v34, 0\n  v_mov_b32 v35, s72")
    for i in range(19):
        r = G + 4*i
        a(f"  v_xor_b32 v36, v35, v{r+1}\n  v_xor_b32 v37, v35, v{r+3}\n  v_or3_b32 v34, v34, v36, v37")
    a(f"""
  v_cmp_ne_u32 vcc, 0, v34
  s_cmp_eq_u64 vcc, 0
  s_cbranch_scc1 K1_gok
  s_sub_u32 s73, s73, 1
  s_cmp_lg_u32 s73, 0
  s_cbranch_scc1 K1_gather
K1_gok:
""")
    a(f"""
  v_lshrrev_b32 v34, 4, v0
  v_lshlrev_b32 v34, 6, v34
  v_and_b32 v35, 7, v0
  v_lshl_add_u32 v34, v35, 3, v34
  v_bfe_u32 v35, v0, 3, 1
  v_lshl_add_u32 v34, v35, 2, v34           ; sigma*64+n*8+sub*4
  v_add_u32 v34, {RSA}, v34
  v_bfe_u32 v35, v0, 4, 2
  v_lshlrev_b32 v35, 2, v35
  v_and_b32 v36, 1, v0
  v_lshl_add_u32 v35, v36, 1, v35
  v_bfe_u32 v36, v0, 3, 1
  v_add_u32 v35, v35, v36                   ; i
  v_lshlrev_b32 v35, 4, v35
  v_bfe_u32 v36, v0, 1, 2
  v_lshl_add_u32 v35, v36, 2, v35           ; i*16+jm*4
  v_add_u32 v35, {RSF}, v35
  v_mul_f32 v36, v{G}, v{G+2}
  v_mul_f32 v37, v{G+4}, v{G+6}
  ds_write_b32 v34, v{G+2}
  ds_write_b32 v34, v{G+6} offset:256
  ds_write_b32 v34, v36 offset:{QA-RSA}
  ds_write_b32 v34, v37 offset:{QA-RSA+256}
  ds_write_b32 v35, v{G+2}
  ds_write_b32 v35, v{G+6} offset:256
  ds_write_b32 v35, v36 offset:{QF-RSF}
  ds_write_b32 v35, v37 offset:{QF-RSF+256}
  v_mov_b32 v36, v{G+8}
  v_mov_b32 v37, v{G+10}
  v_lshlrev_b32 v34, 3, v0
  v_add_u32 v34, {CSL}, v34
  s_mov_b32 exec_hi, 0xffff
  ds_write_b64 v34, v[36:37]
  s_mov_b64 exec, -1
""")
    BAR(a)
    for b in range(2):
        r0 = G + 12 + b*32
        for k in range(1, 8):
            a(f"  v_add_f32 v{r0}, v{r0}, v{r0+4*k}\n  v_add_f32 v{r0+2}, v{r0+2}, v{r0+4*k+2}")
        a(f"""  v_mov_b32 v36, v{r0}
  v_mov_b32 v37, v{r0+2}
  v_mov_b32 v34, v{r0}
  v_mov_b32 v35, v{r0+2}
  s_nop 1
  v_permlane32_swap_b32 v36, v34
  v_permlane32_swap_b32 v37, v35
  s_nop 1
  v_add_f32 v36, v36, v34
  v_add_f32 v37, v37, v35
  v_and_b32 v34, 31, v0
  v_lshlrev_b32 v34, 3, v34
  v_add_u32 v34, {CS1 + b*256}, v34
  ds_write_b64 v34, v[36:37]
""")
    a(f"""
  v_mov_b32 v34, {F_TAB}
  v_mov_b32 v35, 1
  s_waitcnt lgkmcnt(0)
  ds_write_b32 v34, v35
""")
    if ST: stamp(a, 84, ST)
    if P.get('fuse'):
        a(f"K1_drain2:\n  s_cmp_le_u32 s70, {P.get('wf_at', 3)}\n  s_cbranch_scc1 K1_drained2\n  s_barrier\n  s_sub_u32 s70, s70, 1\n  s_branch K1_drain2\nK1_drained2:")
        P['fuse'].wflag(a)
        tick(a, P, 40)
    a("K1_drain:\n  s_cmp_eq_u32 s70, 0\n  s_cbranch_scc1 K1_drained\n  s_barrier\n  s_sub_u32 s70, s70, 1\n  s_branch K1_drain\nK1_drained:")
    if ST: stamp(a, 86, ST)
    tick(a, P, 41)
    if P.get('ticks'): a("  s_mov_b32 s97, 42")
    CP = P.get('cpipe', 0)
    a(f"""
  s_mov_b32 s73, {LIM}
  v_lshlrev_b32 v14, 4, v3
  v_add_u32 v14, {EC_OFF}, v14
  s_mov_b32 s75, 0
  v_lshlrev_b32 v164, {2 if P.get('dbgflag') else 4}, v0
  v_add_u32 v164, {0 if P.get('dbgflag') else WFL_OFF}, v164
  s_cmp_eq_u32 s29, 0
  s_cbranch_scc1 K1_czero
""")
    def c_check(G, sfx, ok):
        if P.get('cfast'):
            a(f"  v_min_u32 v4, v{G+1}, v{G+3}\n  v_max_u32 v5, v{G+1}, v{G+3}")
            for cc in range(1, 15):
                r = G + 4*cc
                a(f"  s_cmp_le_u32 s29, {cc}\n  s_cbranch_scc1 K1_ctag{sfx}\n  v_min3_u32 v4, v4, v{r+1}, v{r+3}\n  v_max3_u32 v5, v5, v{r+1}, v{r+3}")
            a(f"""K1_ctag{sfx}:
  v_xor_b32 v4, s72, v4
  v_xor_b32 v5, s72, v5
  v_or_b32 v34, v4, v5
  s_mov_b32 exec_hi, 0xffff
  v_cmp_ne_u32 vcc, 0, v34
  s_mov_b64 exec, -1
  s_cmp_eq_u64 vcc, 0
  s_cbranch_scc0 K1_cfail{sfx}
  v_mov_b32 v36, v{G}
  v_mov_b32 v37, v{G+2}""")
            hr, hi, nr, ni = 36, 37, 4, 5
            for cc in range(1, 15):
                r = G + 4*cc
                a(f"""  s_cmp_le_u32 s29, {cc}
  s_cbranch_scc1 K1_chx{sfx}_{cc}
  v_fma_f32 v{nr}, v32, v{hr}, v{r}
  v_fma_f32 v{ni}, v32, v{hi}, v{r+2}
  v_fma_f32 v{nr}, -v33, v{hi}, v{nr}
  v_fma_f32 v{ni}, v33, v{hr}, v{ni}""")
                hr, hi, nr, ni = nr, ni, hr, hi
            a(f"  s_branch {ok}")
            for cc in range(1, 15):
                if cc % 2 == 1: a(f"K1_chx{sfx}_{cc}:")
            a(f"  s_branch {ok}")
            for cc in range(1, 15):
                if cc % 2 == 0: a(f"K1_chx{sfx}_{cc}:")
            a(f"  v_mov_b32 v36, v4\n  v_mov_b32 v37, v5\n  s_branch {ok}\nK1_cfail{sfx}:")
            return
        a(f"""  v_mov_b32 v34, 0
  v_mov_b32 v35, s72
  v_mov_b32 v36, v{G}
  v_mov_b32 v37, v{G+2}
  v_xor_b32 v4, v35, v{G+1}
  v_xor_b32 v5, v35, v{G+3}
  v_or3_b32 v34, v34, v4, v5
""")
        for cc in range(1, 15):
            r = G + 4*cc
            a(f"""  s_cmp_le_u32 s29, {cc}
  s_cbranch_scc1 K1_chor{sfx}
  v_xor_b32 v4, v35, v{r+1}
  v_xor_b32 v5, v35, v{r+3}
  v_mul_f32 v6, v33, v37
  v_mul_f32 v7, v33, v36
  v_or3_b32 v34, v34, v4, v5
  v_fma_f32 v36, v32, v36, -v6
  v_fma_f32 v37, v32, v37, v7
  v_add_f32 v36, v36, v{r}
  v_add_f32 v37, v37, v{r+2}""")
        a(f"""K1_chor{sfx}:
  s_mov_b32 exec_hi, 0xffff
  v_cmp_ne_u32 vcc, 0, v34
  s_mov_b64 exec, -1
  s_cmp_eq_u64 vcc, 0
  s_cbranch_scc1 {ok}""")
    WS = P.get('wsync')
    DB = P.get('dbgflag')
    def w_issue():
        if DB: a("  buffer_load_dword v160, v164, s[76:79], 0 offen sc1")
        else: a("  buffer_load_dwordx4 v[160:163], v164, s[36:39], 0 offen sc1")
    def w_check(sfx):
        a(f"  s_cmp_lg_u32 s75, 0\n  s_cbranch_scc1 K1_wck{sfx}")
        if DB: a("  v_xor_b32 v4, 0x01010101, v160")
        else: a("""  v_min3_u32 v4, v160, v161, v162
  v_max3_u32 v5, v160, v161, v162
  v_min_u32 v4, v4, v163
  v_max_u32 v5, v5, v163
  v_xor_b32 v4, s72, v4
  v_xor_b32 v5, s72, v5
  v_or_b32 v4, v4, v5""")
        a(f"""  v_cmp_ne_u32 vcc, 0, v4
  s_cmp_eq_u64 vcc, 0
  s_cbranch_scc0 K1_wck{sfx}
  s_mov_b32 s75, 1
  v_mov_b32 v4, {F_W}
  v_mov_b32 v5, 1
  ds_write_b32 v4, v5
K1_wck{sfx}:""")
    if CP:
        if CP == 2:
            a(f"  v_mov_b32 v34, {F_E}")
            poll_lds(a, 'K1_cstart', 34, 35, 0)
        def c_issue(G2):
            for cc in range(15):
                r = G2 + 4*cc
                a(f"  s_mov_b32 s60, {cc*640*16}\n  s_cmp_gt_u32 s29, {cc}\n  s_cselect_b64 exec, -1, 0\n  buffer_load_dwordx4 v[{r}:{r+3}], v14, s[36:39], s60 offen sc1")
            a("  s_mov_b64 exec, -1")
        c_issue(G)
        a("K1_cpoll:")
        c_issue(G + 60)
        a("  s_waitcnt vmcnt(15)")
        c_check(G, 'a', 'K1_cok')
        c_issue(G)
        a("  s_waitcnt vmcnt(15)")
        c_check(G + 60, 'b', 'K1_cok')
    else:
        a("K1_cpoll:")
        tick(a, P, None)
        if WS == 1: a("  s_cmp_lg_u32 s75, 0\n  s_cbranch_scc1 K1_cnw"); w_issue(); a("K1_cnw:")
        for cc in range(15):
            r = G + 4*cc
            a(f"  s_mov_b32 s60, {cc*640*16}\n  buffer_load_dwordx4 v[{r}:{r+3}], v14, s[36:39], s60 offen sc1\n  s_cmp_le_u32 s29, {cc+1}\n  s_cbranch_scc1 K1_cld")
        a("K1_cld:\n  s_waitcnt vmcnt(0)")
        tick(a, P, None)
        if P.get('ticks'): a("  s_min_u32 s97, s97, 56")
        if WS == 1: w_check('c')
        c_check(G, '', 'K1_cok')
    a(f"""  s_sub_u32 s73, s73, 1
  s_cmp_lg_u32 s73, 0
  s_cbranch_scc1 K1_cpoll
  s_branch K1_cok
K1_czero:
  v_mov_b32 v36, 0
  v_mov_b32 v37, 0
K1_cok:
  v_lshlrev_b32 v34, 3, v0
  v_add_u32 v34, {HIN}, v34
  s_mov_b32 exec_hi, 0xffff
  ds_write_b64 v34, v[36:37]
  s_mov_b64 exec, -1
  v_mov_b32 v34, {F_HIN}
  v_mov_b32 v35, 1
  s_waitcnt lgkmcnt(0)
  ds_write_b32 v34, v35
""")
    if ST: stamp(a, 90, ST)
    if WS:
        a(f"  s_mov_b32 s73, {LIM}\nK1_wonly:\n  s_cmp_lg_u32 s75, 0\n  s_cbranch_scc1 K1_wdone")
        w_issue(); a("  s_waitcnt vmcnt(0)"); w_check('o')
        a("  s_sub_u32 s73, s73, 1\n  s_cmp_lg_u32 s73, 0\n  s_cbranch_scc1 K1_wonly\nK1_wdone:")
    if P.get('bump'):
        a(f"""
  s_cmp_eq_u32 s29, 15
  s_cbranch_scc0 K1_nobump
  s_cmp_eq_u32 s30, 0
  s_cbranch_scc0 K1_nobump
  s_add_u32 s71, s71, 1
  v_mov_b32 v35, s71
  v_mov_b32 v34, 0
  s_mov_b64 exec, 1
  buffer_store_dword v35, v34, s[36:39], 0 offen sc1
  s_waitcnt vmcnt(0)
K1_nobump:""")
    tick(a, P, 60)
    if P.get('fuse') and not P.get('early_hf'): P['fuse'].pollF(a)
    tick(a, P, 61); tick_store(a, P)
    if ST:
        stamp(a, 88, ST)
        a("  s_mov_b64 exec, 1")
        if P.get('dbg'): stamp_dbg(a, [90, 88], 14, P['dbg'], srd0=56)
        elif P.get('fuse'): stamp_store(a, 56, 2, [90, 88], 20, ST, base=56)
        else: stamp_store(a, 56, 2, [84, 86, 88], 20, ST, base=32)
    if P.get('k2v') == 2: a("  s_mov_b64 exec, -1\n  s_branch K2_loader")
    else: a("  s_endpgm")
def k1(P):
    a = Asm()
    prologue(a, P); loaders(a, P); compute(a, P); sync(a, P)
    if P.get('fuse'): P['fuse'].loader(a)
    a("K1_end:\n  s_endpgm")
    return ('K1_kernel', a.text(), 256, 100, 256), ('K1_kernel', (256,1,1), (512,1,1), LDS_BYTES)
if __name__ == '__main__':
    import sys
    B = dict(prod=1, bump=1)
    V = dict(k1q=dict(B, pre0=1), k1w=dict(B, pre0=1, relay=1), k1l=dict(B, pre0=1, relay=1, lst=1))
    for name, P in V.items():
        P = dict(P); P['stamps'] = True
        k, l = k1(P)
        open(f'g/{name}.s', 'w').write(build([k], [l]))
    print(name, len(k[1].split('\n')), 'lines')
```

```python
import sys
from gl import *
import k1_gen
from k1_gen import VM, poll_lds, F_TAG, F_HF, F_FD, WFL_OFF
HFF_OFF, HFS_OFF = 0x81000, 0x82000
NB, NS, NQ = 6, 22, 88
def slot_addr(b): return 40960 + b*20480 if b < 4 else (b-4)*20480
F_W_ = k1_gen.F_W
class Fuse:
    def __init__(self, P): self.P = P
    def rt_calc(self, a, d, x, slot, t0, t1):
        if self.P.get('k2map') == 1:
            a(f"  s_lshr_b32 s{t0}, s{slot}, 3\n  s_lshl_b32 s{t0}, s{t0}, 2\n  s_lshr_b32 s{t1}, s{x}, 1\n  s_add_u32 s{t0}, s{t0}, s{t1}\n  s_lshl_b32 s{t0}, s{t0}, 1\n  s_bfe_u32 s{t1}, s{slot}, 0x10002\n  s_add_u32 s{d}, s{t0}, s{t1}")
        else:
            a(f"  s_lshr_b32 s{t0}, s{x}, 1\n  s_lshl_b32 s{t0}, s{t0}, 3\n  s_lshr_b32 s{t1}, s{slot}, 2\n  s_add_u32 s{d}, s{t0}, s{t1}")
    def rot_calc(self, a, d1, d2, unit):
        R = self.P['rot']
        a(f"""  s_lshr_b32 s60, s2, 5                     ; a = slot>>2
  s_lshr_b32 s61, s2, 3
  s_and_b32 s61, s61, 3                     ; b
  s_mul_i32 s62, s60, {3 if R & 1 else 0}
  s_lshr_b32 s62, s62, 1
  s_mul_i32 s63, s61, {3 if R & 2 else 0}
  s_add_u32 s62, s62, s63
  s_sub_u32 s63, s62, 12
  s_cmp_ge_u32 s62, 12
  s_cselect_b32 s62, s63, s62
  s_mul_i32 s{d1}, s62, {unit}
  s_mul_i32 s62, s61, {5 if R & 8 else 0}
  s_lshr_b32 s62, s62, 1
  s_mul_i32 s60, s60, {1 if R & 4 else 0}
  s_add_u32 s62, s62, s60
  s_sub_u32 s63, s62, 10
  s_cmp_ge_u32 s62, 10
  s_cselect_b32 s62, s63, s62
  s_add_u32 s62, s62, 12
  s_mul_i32 s{d2}, s62, {unit}""")
    def rot_next(self, a, j, s, d1, d2, unit):
        if j == 0: a(f"  s_mov_b32 s{s}, s{d1}")
        elif j == 12: a(f"  s_mov_b32 s{s}, s{d2}")
        else:
            hi, lo = (12, 0) if j < 12 else (22, 12)
            a(f"  s_add_u32 s{s}, s{s}, {unit}\n  s_cmp_eq_u32 s{s}, {hi*unit}\n  s_cselect_b32 s{s}, {lo*unit}, s{s}")
    def touch(self, a, role):
        a("  s_load_dwordx2 s[16:17], s[0:1], 112")
        a("  s_mov_b64 exec, 1")
        for jm in range(4):
            if role: a(f"  s_add_u32 s60, s65, {jm*88*1024}\n  buffer_load_dword v1, v10, s[40:43], s60 offen")
            a(f"  s_add_u32 s60, s68, {jm*88*1024}\n  buffer_load_dword v1, v10, s[40:43], s60 offen")
        a("  s_and_b32 s60, s2, 7\n  s_lshr_b32 s61, s2, 3")
        self.rt_calc(a, 62, 60, 61, 63, 74)
        a("  s_waitcnt lgkmcnt(0)")
        srd(a, 20, 16, S*D*4)
        a(f"  s_lshl_b32 s62, s62, 6\n  s_lshl_b32 s63, s28, 4\n  s_add_u32 s62, s62, s63\n  s_mul_i32 s62, s62, 2560\n  v_mov_b32 v9, s62\n  buffer_load_dword v1, v9, s[20:23], 0 offen\n  s_mov_b64 exec, -1")
    def prepoll(self, a, vm):
        a(f"  v_lshlrev_b32 v7, 4, v0\n  v_add_u32 v7, {WFL_OFF}, v7\n  buffer_load_dwordx4 v[12:15], v7, s[44:47], 0 offen sc1")
        vm.add('pp')
    def flagF(self, a, role):
        if role: a("  s_waitcnt vmcnt(0)")
        if role and self.P.get('wb2', 0) & 1: a("  buffer_wbl2 sc1\n  s_waitcnt vmcnt(0)")
        a(f"""  v_mov_b32 v9, {F_TAG}
  ds_read_b32 v7, v9
  s_lshl_b32 s60, s29, 1
  s_add_u32 s60, s60, s66
  s_lshl_b32 s60, s60, 7
  s_lshl_b32 s61, s30, 1
  s_add_u32 s61, s61, s69                   ; j*2+col
  s_lshl_b32 s61, s61, 2
  s_add_u32 s78, s60, s61
  s_add_u32 s60, s78, {HFF_OFF}
  v_mov_b32 v1, s60
  s_waitcnt lgkmcnt(0)
  v_readfirstlane_b32 s79, v7               ; tag
  s_mov_b64 exec, 1
  buffer_store_dword v7, v1, s[44:47], 0 offen sc1
  s_lshl_b32 s60, s28, 2
  s_add_u32 s60, s60, {F_FD}
  v_mov_b32 v9, s60
  v_mov_b32 v7, 1
  ds_write_b32 v9, v7
  s_mov_b64 exec, -1""")
    def wflag(self, a):
        if self.P.get('dbgflag'):
            a("  s_load_dwordx2 s[76:77], s[0:1], 120\n  s_waitcnt lgkmcnt(0)\n  s_and_b32 s77, s77, 0xffff\n  s_mov_b32 s78, 256\n  s_mov_b32 s79, 0x20000")
            a("""  v_mov_b32 v34, s2
  v_mov_b32 v35, 1
  s_waitcnt vmcnt(0)
  s_mov_b64 exec, 1
  buffer_store_byte v35, v34, s[76:79], 0 offen sc1
  s_mov_b64 exec, -1""")
            return
        a(f"""  s_lshl_b32 s60, s2, 2
  s_add_u32 s60, s60, {WFL_OFF}
  v_mov_b32 v34, s60
  v_mov_b32 v35, s72
  s_waitcnt vmcnt(0)
  s_mov_b64 exec, 1
  buffer_store_dword v35, v34, s[36:39], 0 offen sc1
  s_mov_b64 exec, -1""")
    def pollF(self, a):
        LIM = self.P.get('poll_limit', 1 << 16)
        a(f"""  s_mov_b64 exec, -1
  s_and_b32 s62, s2, 7
  s_lshr_b32 s63, s2, 3""")
        self.rt_calc(a, 60, 62, 63, 64, 65)
        a(f"""  s_lshl_b32 s60, s60, 7
  s_add_u32 s60, s60, {HFF_OFF}
  v_and_b32 v34, 31, v0
  v_lshlrev_b32 v34, 2, v34
  v_add_u32 v34, s60, v34
  s_mov_b32 s73, {LIM}""")
        if self.P.get('fpipe'):
            a("""  buffer_load_dword v35, v34, s[36:39], 0 offen sc1
K1_fpoll:
  buffer_load_dword v38, v34, s[36:39], 0 offen sc1
  s_waitcnt vmcnt(1)
  v_cmp_ne_u32 vcc, s72, v35
  s_cmp_eq_u64 vcc, 0
  s_cbranch_scc1 K1_fok
  buffer_load_dword v35, v34, s[36:39], 0 offen sc1
  s_waitcnt vmcnt(1)
  v_cmp_ne_u32 vcc, s72, v38
  s_cmp_eq_u64 vcc, 0
  s_cbranch_scc1 K1_fok""")
        else:
            a("""K1_fpoll:
  buffer_load_dword v35, v34, s[36:39], 0 offen sc1
  s_waitcnt vmcnt(0)
  v_cmp_ne_u32 vcc, s72, v35
  s_cmp_eq_u64 vcc, 0
  s_cbranch_scc1 K1_fok""")
        a(f"""  s_sub_u32 s73, s73, 1
  s_cmp_lg_u32 s73, 0
  s_cbranch_scc1 K1_fpoll
K1_fok:
  v_mov_b32 v34, {F_HF}
  v_mov_b32 v36, 1
  ds_write_b32 v34, v36
  s_waitcnt vmcnt(0) lgkmcnt(0)""")
    def k2_setup(self, a, ssm):
        P = self.P; ST = P.get('stamps')
        a(f"""  s_load_dwordx2 s[4:5], s[0:1], 0
  s_load_dwordx2 s[6:7], s[0:1], 64
  s_load_dwordx2 s[8:9], s[0:1], 104
  s_load_dwordx2 s[12:13], s[0:1], 112
  s_load_dwordx2 s[10:11], s[0:1], 128
  s_and_b32 s60, s2, 7
  s_lshr_b32 s61, s2, 3                     ; slot
  s_and_b32 s62, s60, 1
  s_lshl_b32 s62, s62, 2
  s_and_b32 s63, s61, 3
  s_add_u32 s64, s62, s63                   ; ct
""")
        self.rt_calc(a, 65, 60, 61, 62, 63)
        a("  s_and_b32 s61, s28, 3                     ; w\n  s_waitcnt lgkmcnt(0)")
        if ssm:
            srd(a, 16, 4, S*D*2); srd(a, 20, 6, D*2); srd(a, 56, 12, S*D*4)
        else: srd(a, 24, 8, D*2)
        srd_off(a, 32, 10, HF_OFF, HF_BYTES)
        srd_off(a, 52, 10, WF_OFF, WF_BYTES)
        srd(a, 36, 10, 0x100000)
        if ST: srd_off(a, 48, 10, 0xF000000, 0x100000)
        q0 = 48 if ssm else 0
        a(f"""  v_lshlrev_b32 v3, 4, v0                   ; lane*16
  s_add_u32 s62, s61, {q0}                  ; first q
  s_mul_i32 s63, s64, {0 if P.get('exp', 0) & 1 else 88*5120}
  s_mul_i32 s60, s62, 5120
  s_add_u32 s63, s63, s60
  v_add_u32 v1, s63, v3                     ; W voffset
  s_mul_i32 s63, s65, {0 if P.get('exp', 0) & 2 else 4*88*1024}
  s_lshl_b32 s60, s62, 10
  s_add_u32 s63, s63, s60
  v_add_u32 v2, s63, v3                     ; H voffset""")
        for j in range(4):
            a(f"  s_add_u32 s{66+j}, s61, {j}\n  s_and_b32 s{66+j}, s{66+j}, 3\n  s_mul_i32 s{66+j}, s{66+j}, {88*1024}")
    def k2_eaddr(self, a):
        a(f"""  v_and_b32 v5, 15, v0                      ; i
  v_lshrrev_b32 v6, 4, v0                   ; g
  v_lshrrev_b32 v7, 2, v5
  v_lshlrev_b32 v7, 4, v7
  v_and_b32 v254, 1, v5
  v_lshl_add_u32 v7, v254, 3, v7
  v_bfe_u32 v254, v5, 1, 1
  v_add_u32 v7, v7, v254
  s_lshl_b32 s62, s65, 6
  s_lshl_b32 s63, s61, 1
  s_add_u32 s62, s62, s63
  v_add_u32 v7, s62, v7                     ; t
  s_mul_i32 s63, s64, 80
  v_lshl_add_u32 v5, v6, 2, s63             ; d0
  v_lshlrev_b32 v4, 4, v7
  v_add_u32 v4, {XS_OFF}, v4
  v_mul_u32_u24 v7, 640, v7
  v_add_u32 v7, v7, v5
  v_lshlrev_b32 v6, 1, v7
  v_lshlrev_b32 v7, 2, v7
  v_lshlrev_b32 v5, 1, v5""")
    def k2v2(self, a, ssm):
        P = self.P; ST = P.get('stamps'); LIM = P.get('poll_limit', 1 << 16)
        DP = P.get('dps', 4) if ssm else P.get('dpf', 4); n = 10 if ssm else 12
        FL = k1_gen.FL; F_HS = FL + 44; RF = FL + (96 if ssm else 80); GF = FL + 112
        G = 61440 if ssm else 0
        A = lambda j, nt: 8 + (j*5 + nt)*4
        WL = P.get('wl'); WD = 3 if WL else DP
        LW = 0 if ssm else P.get('lw', 0)
        WB = lambda i, nt: 88 + ((i & 1)*20 if WL else (i % DP)*36) + nt*4
        HB = lambda i, j: (128 + (i % DP)*16 if WL else 88 + (i % DP)*36 + 20) + j*4
        EX, ED, EM = 232, 242, 252
        sx = 's' if ssm else 'f'
        vm = VM()
        def lds1(lbl, addr, sreg_add=None):
            if sreg_add: a(f"  s_lshl_b32 s60, s{sreg_add}, 2\n  s_add_u32 s60, s60, {addr}\n  v_mov_b32 v254, s60")
            else: a(f"  v_mov_b32 v254, {addr}")
            poll_lds(a, lbl, 254, 255, 0)
        def lds4(lbl, addr, t=244, mask=None):
            a(f"""  v_mov_b32 v254, {addr}
{lbl}:
  ds_read_b128 v[{t}:{t+3}], v254
  s_waitcnt lgkmcnt(0)
  v_and_b32 v{t}, v{t}, v{t+1}
  v_and_b32 v{t+2}, v{t+2}, v{t+3}
  v_and_b32 v{t}, v{t}, v{t+2}
  s_nop 0
  v_readfirstlane_b32 s60, v{t}
  s_and_b32 s60, s60, {mask if mask else -1}
  s_cbranch_scc0 {lbl}""")
        def setflag(addr, sreg_add=None, val=1):
            if sreg_add: a(f"  s_lshl_b32 s60, s{sreg_add}, 2\n  s_add_u32 s60, s60, {addr}\n  v_mov_b32 v254, s60")
            else: a(f"  v_mov_b32 v254, {addr}")
            a(f"  v_mov_b32 v255, {val}\n  ds_write_b32 v254, v255")
        def wload(i, nt):
            if WL:
                if nt == 0: a(f"  s_mov_b32 s70, {i*20480}\n  s_add_u32 m0, s31, {(i % WD)*5120}\n  s_mov_b32 s71, {i*20480+4096}")
                if nt < 4: a(f"  buffer_load_dwordx4 v1, s[52:55], s70 offen offset:{nt*1024} lds")
                else: a(f"  s_add_u32 m0, s31, {(i % WD)*5120+4096}\n  s_nop 0\n  buffer_load_dwordx4 v1, s[52:55], s71 offen lds")
                vm.add(('w', i))
                return
            if nt == 0: a(f"  s_mov_b32 s70, {i*20480}\n  s_mov_b32 s71, {i*20480+4096}")
            r = WB(i, nt)
            if nt < 4: a(f"  buffer_load_dwordx4 v[{r}:{r+3}], v1, s[52:55], s70 offen offset:{nt*1024}{P.get('lmw', '')}")
            else: a(f"  buffer_load_dwordx4 v[{r}:{r+3}], v1, s[52:55], s71 offen{P.get('lmw', '')}")
            vm.add(('w', i))
        def hload(i, j):
            r = HB(i, j)
            a(f"  buffer_load_dwordx4 v[{r}:{r+3}], v2, s[32:35], s{66+j} offen{P.get('lmh', '')}\n  s_add_u32 s{66+j}, s{66+j}, 4096")
            vm.add(('h', i))
        a("K2_compute:" if ssm else "K2_loader:")
        if P.get('prio') and not ssm: a(f"  s_setprio {P['prio']}")
        if P.get('sprio') and ssm: a(f"  s_setprio {P['sprio'][0]}")
        self.k2_setup(a, ssm)
        if WL: a(f"  s_mul_i32 s31, s61, 15360\n  s_add_u32 s31, s31, {G}")
        if ssm:
            SWL = P.get('sw_late', 0)
            def swpre():
                lds1('K2s_w', F_W_)
                for i in range(WD):
                    for nt in range(5): wload(i, nt)
            if SWL == 3:
                a("  s_cmp_eq_u32 s61, 0\n  s_cbranch_scc1 K2s_w0skip")
                swpre()
                a(f"  s_waitcnt vmcnt({5*DP})\n  s_branch K2s_w0j\nK2s_w0skip:\n  s_waitcnt vmcnt(0)\nK2s_w0j:")
            if not SWL: swpre()
            CH = P.get('chain')
            if CH: a("  s_setprio 3")
            a(f"""  s_waitcnt vmcnt({0 if SWL in (1, 2) else 5*WD})
  s_add_u32 s60, s78, {HFS_OFF}
  v_mov_b32 v254, s60
  v_mov_b32 v255, s79
  s_mov_b64 exec, 1
  buffer_store_dword v255, v254, s[36:39], 0 offen sc1
  s_mov_b64 exec, -1""")
            vm.add('f')
            if P.get('fsgate'): setflag(k1_gen.F_P2, 61, 3)
            if CH: a("  s_setprio 0")
            for r in range(A(1, 0), A(4, 0)): a(f"  v_mov_b32 v{r}, 0")
            self.k2_eaddr(a)
            lds1('K2s_hf', F_HF)
            if CH: a("  s_cmp_eq_u32 s61, 0\n  s_cbranch_scc0 K2s_np3\n  s_setprio 3\nK2s_np3:")
            a(f"  buffer_load_dword v{EM}, v4, s[36:39], 0 offen sc1\n  buffer_load_dword v{EM+1}, v4, s[36:39], 0 offen offset:8 sc1"); vm.add('e', 2)
            for nt in range(5):
                a(f"  buffer_load_dwordx2 v[{EX+2*nt}:{EX+2*nt+1}], v6, s[16:19], 0 offen offset:{nt*32}")
                a(f"  buffer_load_dwordx2 v[{ED+2*nt}:{ED+2*nt+1}], v5, s[20:23], 0 offen offset:{nt*32}")
                vm.add('e', 2)
            if SWL == 1: swpre()
            a(f"""  s_cmp_eq_u32 s61, 0
  s_cbranch_scc0 K2s_nopoll
  v_and_b32 v8, 31, v0
  v_lshlrev_b32 v8, 2, v8
  s_lshl_b32 s62, s65, 7
  s_add_u32 s62, s62, {HFS_OFF}
  v_add_u32 v8, s62, v8
  s_mov_b32 s73, {LIM}
K2s_poll:
  buffer_load_dword v9, v8, s[36:39], 0 offen sc1
  s_waitcnt vmcnt(0)
  v_cmp_ne_u32 vcc, s79, v9
  s_cmp_eq_u64 vcc, 0
  s_cbranch_scc1 K2s_pok
  s_sub_u32 s73, s73, 1
  s_cmp_lg_u32 s73, 0
  s_cbranch_scc1 K2s_poll
K2s_pok:""")
            setflag(F_HS)
            if CH: a("  s_setprio 0")
            if SWL == 3:
                sv = list(vm.ops)
                lds1('K2s_w0', F_W_)
                for i in range(WD):
                    for nt in range(5): wload(i, nt)
                vm.ops = sv
            a("  s_branch K2s_go\nK2s_nopoll:")
            lds1('K2s_hs', F_HS)
            a("K2s_go:")
            if ST: stamp(a, 98, ST)
            if P.get('sprio'): a(f"  s_setprio {P['sprio'][1]}")
            if SWL == 2:
                lds1('K2s_w', F_W_)
                for i in range(DP):
                    for nt in range(5 if i < WD else 0): wload(i, nt)
                    for j in range(4): hload(i, j)
            else:
                for i in range(DP):
                    for j in range(4): hload(i, j)
            a(f"  s_waitcnt vmcnt({vm.after('e')})")
            for nt in range(5):
                for h in range(2):
                    o = A(0, nt) + 2*h; x = EX + 2*nt + h; d = ED + 2*nt + h
                    a(f"  v_lshlrev_b32 v4, 16, v{x}\n  v_and_b32 v5, 0xffff0000, v{x}\n  v_lshlrev_b32 v6, 16, v{d}\n  v_and_b32 v7, 0xffff0000, v{d}")
                    rnd = lambda dst: a(f"  v_cvt_pk_bf16_f32 v254, v4, v5\n  v_lshlrev_b32 v{dst}, 16, v254\n  v_and_b32 v{dst+1}, 0xffff0000, v254")
                    pk(a, 'add', 4, 4, (EM, 'l', 'b')); rnd(4)
                    pk(a, 'mul', 4, 4, (EM, 'h')); rnd(4)
                    pk(a, 'mul', 4, 4, 6); rnd(o)
        else:
            a(f"""  v_lshrrev_b32 v6, 4, v0
  s_mul_i32 s63, s64, 80
  v_lshl_add_u32 v5, v6, 2, s63
  v_lshlrev_b32 v5, 1, v5""")
            for nt in range(5): a(f"  buffer_load_dwordx2 v[{ED+2*nt}:{ED+2*nt+1}], v5, s[24:27], 0 offen offset:{nt*32}")
            vm.add('e', 5)
            a(f"""  v_mov_b32 v8, {F_TAG}
  ds_read_b32 v8, v8
  v_add_u32 v9, {WFL_OFF}, v3
  s_mov_b32 s73, {LIM}
  s_waitcnt lgkmcnt(0)""")
            lds4('K2f_fd', F_FD, 16)
            a(f"""  s_cmp_eq_u32 s61, 0
  s_cbranch_scc0 K2f_nopoll
K2f_wpoll:
  buffer_load_dwordx4 v[12:15], v9, s[36:39], 0 offen sc1
  s_waitcnt vmcnt(0)
  v_xor_b32 v12, v12, v8
  v_xor_b32 v13, v13, v8
  v_xor_b32 v14, v14, v8
  v_xor_b32 v15, v15, v8
  v_or3_b32 v12, v12, v13, v14
  v_or_b32 v12, v12, v15
  v_cmp_ne_u32 vcc, 0, v12
  s_cmp_eq_u64 vcc, 0
  s_cbranch_scc1 K2f_wok
  s_sub_u32 s73, s73, 1
  s_cmp_lg_u32 s73, 0
  s_cbranch_scc1 K2f_wpoll
K2f_wok:""")
            setflag(F_W_)
            a("  s_branch K2f_go\nK2f_nopoll:")
            lds1('K2f_w', F_W_)
            a("K2f_go:")
            W0 = min(P.get('fw0', 99), WD); H2 = P.get('early_hf') == 2
            def gate():
                if P.get('fw0', 99) > WD: return
                if P.get('fgate', 'p') == 'p': lds4('K2f_p2g', k1_gen.F_P2, 244 if H2 else 16, 2 if P.get('fsgate') else None)
                else: lds1('K2f_hin', k1_gen.F_HIN)
            def hpoll():
                a(f"""  s_cmp_eq_u32 s61, 0
  s_cbranch_scc0 K2f_nohf
  v_and_b32 v9, 31, v0
  v_lshlrev_b32 v9, 2, v9
  s_lshl_b32 s62, s65, 7
  s_add_u32 s62, s62, {HFF_OFF}
  v_add_u32 v9, s62, v9
  s_mov_b32 s73, {LIM}
K2f_hpoll:
  buffer_load_dword v12, v9, s[36:39], 0 offen sc1
  s_waitcnt vmcnt(0)
  v_cmp_ne_u32 vcc, v8, v12
  s_cmp_eq_u64 vcc, 0
  s_cbranch_scc1 K2f_hok
  s_sub_u32 s73, s73, 1
  s_cmp_lg_u32 s73, 0
  s_cbranch_scc1 K2f_hpoll
K2f_hok:""")
                setflag(F_HF)
                a("K2f_nohf:")
            def accinit():
                a(f"  s_waitcnt vmcnt({vm.after('e')})")
                for nt in range(5):
                    for h in range(2):
                        o = A(0, nt) + 2*h; d = ED + 2*nt + h
                        a(f"  v_lshlrev_b32 v{o}, 16, v{d}\n  v_and_b32 v{o+1}, 0xffff0000, v{d}")
                for r in range(A(1, 0), A(4, 0)): a(f"  v_mov_b32 v{r}, 0")
            for i in range(W0):
                for nt in range(5): wload(i, nt)
            if LW:
                a("  s_mul_i32 s31, s61, 15360")
                for i in range(DP, DP + LW):
                    a(f"  s_mov_b32 s70, {i*20480}\n  s_add_u32 m0, s31, {(i-DP)*5120}\n  s_mov_b32 s71, {i*20480+4096}")
                    for nt in range(4): a(f"  buffer_load_dwordx4 v1, s[52:55], s70 offen offset:{nt*1024} lds")
                    a(f"  s_add_u32 m0, s31, {(i-DP)*5120+4096}\n  s_nop 0\n  buffer_load_dwordx4 v1, s[52:55], s71 offen lds")
                    vm.add(('w', i), 5)
            if H2:
                hpoll(); accinit(); gate()
                lds1('K2f_hf', F_HF)
                for i in range(DP):
                    if W0 <= i < WD:
                        for nt in range(5): wload(i, nt)
                    for j in range(4): hload(i, j)
            else:
                gate()
                for i in range(W0, WD):
                    for nt in range(5): wload(i, nt)
                if P.get('early_hf'): hpoll()
                accinit()
                lds1('K2f_hf', F_HF)
                for i in range(DP):
                    for j in range(4): hload(i, j)
        T3 = P.get('tail3') and not WL
        def raddr():
            for j in range(1, 4):
                a(f"  s_add_u32 s60, s61, {j}\n  s_and_b32 s60, s60, 3\n  s_mul_i32 s60, s60, 15360\n  s_add_u32 s60, s60, {G + (j-1)*5120}\n  v_add_u32 v{3+j}, s60, v3")
        def wread(i):
            for nt in range(5): a(f"  ds_read_b128 v[{WB(i,nt)}:{WB(i,nt)+3}], v5 offset:{(i % WD)*5120 + nt*1024}")
        if WL:
            a(f"  v_add_u32 v5, s31, v3\n  s_waitcnt vmcnt({vm.after(('w', 0))})")
            wread(0)
        for i in range(n if WL else 0):
            a(f"  s_waitcnt vmcnt({min(vm.after(('w', min(i+1, n-1))), vm.after(('h', i)))})")
            if ST and i == 0: stamp(a, 74, ST)
            if i + 1 < n:
                wread(i + 1); a("  s_waitcnt lgkmcnt(5)")
            else: a("  s_waitcnt lgkmcnt(0)")
            for j in range(4):
                for nt in range(5):
                    c = A(j, nt); w = WB(i, nt); h = HB(i, j)
                    a(f"  v_mfma_f32_16x16x32_bf16 v[{c}:{c+3}], v[{w}:{w+3}], v[{h}:{h+3}], v[{c}:{c+3}]")
                    if j == 0 and i + WD < n: wload(i + WD, nt)
                if i + DP < n: hload(i + DP, j)
        for i in range(0 if WL else n):
            a(f"  s_waitcnt vmcnt({min(vm.after(('w', i)), vm.after(('h', i)))})")
            if LW and i == 0: a("  v_add_u32 v7, s31, v3")
            if LW and DP <= i < DP + LW:
                a("  s_waitcnt lgkmcnt(0)")
                if i == DP + LW - 1: setflag(RF, 61, 1)
            if ST and i == 0: stamp(a, 74, ST)
            if T3 and i == n - 1:
                if LW: lds4(f'K2{sx}_dn', RF)
                if not ssm: lds4(f'K2{sx}_p2', k1_gen.F_P2)
                raddr()
                for p, j in enumerate((1, 2, 3, 0)):
                    for nt in range(5):
                        c = A(j, nt); w = WB(i, nt); h = HB(i, j)
                        a(f"  v_mfma_f32_16x16x32_bf16 v[{c}:{c+3}], v[{w}:{w+3}], v[{h}:{h+3}], v[{c}:{c+3}]")
                        if p >= 2: a(f"  ds_write_b128 v{3+p-1}, v[{A(p-1,nt)}:{A(p-1,nt)+3}] offset:{nt*1024}")
                continue
            for j in range(4):
                for nt in range(5):
                    c = A(j, nt); w = WB(i, nt); h = HB(i, j)
                    a(f"  v_mfma_f32_16x16x32_bf16 v[{c}:{c+3}], v[{w}:{w+3}], v[{h}:{h+3}], v[{c}:{c+3}]")
                    if j == 3 and i + DP < n:
                        if i < LW:
                            if nt == 0: a(f"  s_waitcnt vmcnt({vm.after(('w', i + DP))})")
                            r = WB(i + DP, nt)
                            a(f"  ds_read_b128 v[{r}:{r+3}], v7 offset:{i*5120 + nt*1024}")
                        else: wload(i + DP, nt)
                if i + DP < n: hload(i + DP, j)
        if ST: stamp(a, 76, ST)
        if WL:
            setflag(RF, 61)
            lds4(f'K2{sx}_dn', RF)
        elif not (ssm and P.get('tail2')) and not T3: lds4(f'K2{sx}_p2', k1_gen.F_P2)
        if not T3: raddr()
        a("  s_nop 7" if T3 else "  s_nop 7\n  s_nop 7")
        for j in range(3 if T3 else 1, 4):
            for nt in range(5): a(f"  ds_write_b128 v{3+j}, v[{A(j,nt)}:{A(j,nt)+3}] offset:{nt*1024}")
        a("  s_waitcnt lgkmcnt(0)")
        setflag(RF, 61, 3 if (WL or LW) else 1)
        a(f"  s_mul_i32 s60, s61, 15360\n  s_add_u32 s60, s60, {G}\n  v_add_u32 v4, s60, v3")
        if ssm and P.get('tail2'):
            a("  v_mov_b32 v1, v4")
            self.k2_eaddr(a)
            a("  s_mul_i32 s60, s61, 15360\n  v_add_u32 v4, s60, v3")
            for nt in range(5):
                for h in range(2):
                    x = EX + 2*nt + h
                    a(f"  v_lshlrev_b32 v{168+4*nt+2*h}, 16, v{x}\n  v_and_b32 v{168+4*nt+2*h+1}, 0xffff0000, v{x}")
            lds1('K2s_g', GF, 61)
            if ST: stamp(a, 72, ST)
            for nt in range(5): a(f"  ds_read_b128 v[{148+4*nt}:{148+4*nt+3}], v4 offset:{nt*1024}")
            lds4(f'K2{sx}_rf', RF, 244, 2 if WL else None)
            if ST: stamp(a, 82, ST)
            for nt in range(5):
                for j in range(3): a(f"  ds_read_b128 v[{88+4*(j*5+nt)}:{88+4*(j*5+nt)+3}], v1 offset:{(j*5+nt)*1024}")
            for nt in range(5):
                a(f"  s_waitcnt lgkmcnt({12 - 3*nt})")
                for h in range(2):
                    pk(a, 'add', 88 + 4*nt + 2*h, 88 + 4*nt + 2*h, 88 + 4*(5+nt) + 2*h)
                    pk(a, 'add', A(0,nt) + 2*h, A(0,nt) + 2*h, 88 + 4*(10+nt) + 2*h)
                for h in range(2): pk(a, 'add', A(0,nt) + 2*h, A(0,nt) + 2*h, 88 + 4*nt + 2*h)
                for h in range(2): pk(a, 'fma', A(0,nt) + 2*h, A(0,nt) + 2*h, 148 + 4*nt + 2*h, 168 + 4*nt + 2*h)
                a(f"  buffer_store_dwordx4 v[{A(0,nt)}:{A(0,nt)+3}], v7, s[56:59], 0 offen offset:{nt*64}{P.get('ost', ' sc1')}")
            if ST:
                a("  s_waitcnt vmcnt(0)")
                stamp(a, 70, ST)
                a("  s_cmp_lg_u32 s28, 0\n  s_cbranch_scc1 K1_end\n  s_mov_b64 exec, 1")
                stamp_store(a, 48, 2, [80,84,86], 20, ST, base=0); stamp_store(a, 48, 2, [90,92,94], 20, ST, base=16)
                stamp_store(a, 48, 2, [98,74,76,82,72,70], 20, ST, base=32)
            a("  s_endpgm")
            return
        lds4(f'K2{sx}_rf', RF, 244, 2 if (WL or LW) else None)
        for k in range(15): a(f"  ds_read_b128 v[{88+4*k}:{88+4*k+3}], v4 offset:{k*1024}")
        for j in range(3):
            a(f"  s_waitcnt lgkmcnt({10 - 5*j})")
            for nt in range(5):
                for h in range(2): pk(a, 'add', A(0,nt) + 2*h, A(0,nt) + 2*h, 88 + 4*(j*5+nt) + 2*h)
        if ST: stamp(a, 82, ST)
        if not ssm:
            for nt in range(5):
                o = A(0, nt)
                for r in range(4): a(f"  v_mul_f32 v{88+r}, 0xbfb8aa3b, v{o+r}")
                for r in range(4): a(f"  v_exp_f32 v{88+r}, v{88+r}")
                for r in range(4): a(f"  v_add_f32 v{88+r}, 1.0, v{88+r}")
                for r in range(4): a(f"  v_rcp_f32 v{88+r}, v{88+r}")
                for r in range(4): a(f"  v_mul_f32 v{o+r}, v{o+r}, v{88+r}")
                a(f"  ds_write_b128 v4, v[{o}:{o+3}] offset:{nt*1024}")
            a("  s_waitcnt lgkmcnt(0)")
            setflag(GF, 61)
            a("  s_waitcnt lgkmcnt(0)")
            if ST:
                a("  s_cmp_lg_u32 s28, 4\n  s_cbranch_scc1 K1_end\n  s_mov_b64 exec, 1")
                stamp_store(a, 48, 2, [74], 20, ST, base=12); stamp_store(a, 48, 2, [76], 20, ST, base=28)
            a("  s_endpgm")
            return
        self.k2_eaddr(a)
        a("  s_mul_i32 s60, s61, 15360\n  v_add_u32 v4, s60, v3")
        lds1('K2s_g', GF, 61)
        if ST: stamp(a, 72, ST)
        for nt in range(5): a(f"  ds_read_b128 v[{88+4*nt}:{88+4*nt+3}], v4 offset:{nt*1024}")
        for nt in range(5):
            for h in range(2):
                x = EX + 2*nt + h
                a(f"  v_lshlrev_b32 v{108+4*nt+2*h}, 16, v{x}\n  v_and_b32 v{108+4*nt+2*h+1}, 0xffff0000, v{x}")
        for nt in range(5):
            a(f"  s_waitcnt lgkmcnt({4 - nt})")
            for r in range(4): a(f"  v_fma_f32 v{A(0,nt)+r}, v{A(0,nt)+r}, v{88+4*nt+r}, v{108+4*nt+r}")
            a(f"  buffer_store_dwordx4 v[{A(0,nt)}:{A(0,nt)+3}], v7, s[56:59], 0 offen offset:{nt*64} sc1")
        if ST:
            a("  s_waitcnt vmcnt(0)")
            stamp(a, 70, ST)
            a("  s_cmp_lg_u32 s28, 0\n  s_cbranch_scc1 K1_end\n  s_mov_b64 exec, 1")
            stamp_store(a, 48, 2, [80,84,86], 20, ST, base=0); stamp_store(a, 48, 2, [90,92,94], 20, ST, base=16)
            stamp_store(a, 48, 2, [98,74,76,82,72,70], 20, ST, base=32)
        a("  s_endpgm")
    def compute(self, a):
        if self.P.get('k2v') == 2: return self.k2v2(a, True)
        P = self.P; ST = P.get('stamps'); PF = P.get('k2_pf', 16); LIM = P.get('poll_limit', 1 << 16)
        vm = VM()
        a(f"""K2_compute:
  s_load_dwordx2 s[4:5], s[0:1], 0
  s_load_dwordx2 s[6:7], s[0:1], 64
  s_load_dwordx2 s[8:9], s[0:1], 104
  s_load_dwordx2 s[12:13], s[0:1], 112
  s_load_dwordx2 s[10:11], s[0:1], 128
  s_and_b32 s60, s2, 7
  s_lshr_b32 s61, s2, 3                     ; slot
  s_and_b32 s62, s60, 1
  s_lshl_b32 s62, s62, 2
  s_and_b32 s63, s61, 3
  s_add_u32 s64, s62, s63                   ; ct
""")
        self.rt_calc(a, 65, 60, 61, 62, 63)
        a("  s_waitcnt lgkmcnt(0)")
        srd(a, 16, 4, S*D*2)
        srd(a, 20, 6, D*2)
        srd(a, 24, 8, D*2)
        srd(a, 56, 12, S*D*4)
        srd_off(a, 32, 10, HF_OFF, HF_BYTES)
        srd(a, 36, 10, 0x100000)
        ACF, ACS = 8, 28
        HR = 48; WS = HR + PF*4; EX = WS + 40; EB = EX + 10; ED = EB + 10; EXS = ED + 10; ET = EXS + 4
        assert ET + 16 <= 256
        a(f"""
  v_lshlrev_b32 v3, 4, v0                   ; lane*16
  s_lshl_b32 s62, s65, 2
  s_add_u32 s62, s62, s28
  s_mul_i32 s62, s62, {88*1024}
  v_add_u32 v4, s62, v3                     ; H voffset
  v_and_b32 v5, 15, v0                      ; i
  v_lshrrev_b32 v6, 4, v0                   ; g
  v_lshrrev_b32 v7, 2, v5
  v_lshlrev_b32 v7, 4, v7
  v_and_b32 v1, 1, v5
  v_lshl_add_u32 v7, v1, 3, v7
  v_bfe_u32 v1, v5, 1, 1
  v_add_u32 v7, v7, v1
  s_lshl_b32 s62, s65, 6
  s_lshl_b32 s63, s28, 1
  s_add_u32 s62, s62, s63
  v_add_u32 v7, s62, v7                     ; t
  s_mul_i32 s63, s64, 80
  v_lshl_add_u32 v5, v6, 2, s63             ; d0
  v_lshlrev_b32 v{ET}, 4, v7
  v_add_u32 v{ET}, {XS_OFF}, v{ET}
  v_mul_u32_u24 v7, 640, v7
  v_add_u32 v7, v7, v5
  v_lshlrev_b32 v6, 1, v7
  v_lshlrev_b32 v7, 2, v7
  v_lshlrev_b32 v5, 1, v5
  v_and_b32 v{ET+8}, 31, v0
  v_lshlrev_b32 v{ET+8}, 2, v{ET+8}
  s_lshl_b32 s62, s65, 7
  s_add_u32 s62, s62, {HFS_OFF}
  v_add_u32 v{ET+8}, s62, v{ET+8}
  v_add_u32 v1, 40960, v3
  v_add_u32 v2, {slot_addr(3)}, v3
  v_mov_b32 v9, {F_HF}
""")
        if P.get('rot'): self.rot_calc(a, 53, 54, 4096)
        if ST: stamp(a, 96, ST)
        poll_lds(a, 'K2_hfp', 9, 8, 0)
        if ST: stamp(a, 98, ST)
        def hload(q):
            j, k = divmod(q, 4)
            r = HR + (q % PF)*4
            if k == 0 and P.get('rot'): self.rot_next(a, j, 55, 53, 54, 4096)
            elif k == 0: a(f"  s_movk_i32 s55, {j*4}\n  s_lshl_b32 s55, s55, 10")
            a(f"  buffer_load_dwordx4 v[{r}:{r+3}], v4, s[32:35], s55 offen offset:{k*1024}{P.get('lmh', '')}")
            vm.add(('h', q))
        RP = P.get('ramp', 0)
        ELATE = P.get('elate', 0)
        def eload(k):
            if k == 0:
                a(f"  buffer_load_dwordx4 v[{EXS}:{EXS+3}], v{ET}, s[36:39], 0 offen sc1"); vm.add('e')
            else:
                nt = k - 1
                a(f"  buffer_load_dwordx2 v[{EX+2*nt}:{EX+2*nt+1}], v6, s[16:19], 0 offen offset:{nt*32}")
                a(f"  buffer_load_dwordx2 v[{EB+2*nt}:{EB+2*nt+1}], v5, s[24:27], 0 offen offset:{nt*32}")
                a(f"  buffer_load_dwordx2 v[{ED+2*nt}:{ED+2*nt+1}], v5, s[20:23], 0 offen offset:{nt*32}")
                vm.add('e', 3)
        hnext = [0]
        def hupto(n):
            while hnext[0] < min(n, NQ): hload(hnext[0]); hnext[0] += 1
        hupto(RP if RP else PF)
        if not ELATE:
            for k in range(6): eload(k)
        for r in range(40): a(f"  v_mov_b32 v{ACF+r}, 0")
        def wread(q, nt):
            j, k = divmod(q, 4); b = j % NB
            if b < 3: base, off = 'v1', b*20480
            elif b == 3: base, off = 'v2', 0
            else: base, off = 'v3', (b-4)*20480
            r = WS + (q & 1)*20 + nt*4
            a(f"  ds_read_b128 v[{r}:{r+3}], {base} offset:{off + (k*5+nt)*1024}")
        def mfma(q, nt):
            acc = (ACF if q < 48 else ACS) + nt*4
            w = WS + (q & 1)*20 + nt*4
            h = HR + (q % PF)*4
            a(f"  v_mfma_f32_16x16x32_bf16 v[{acc}:{acc+3}], v[{w}:{w+3}], v[{h}:{h+3}], v[{acc}:{acc+3}]")
        def mid_epilogue(a=a):
            a("  s_nop 7\n  s_nop 1")
            m, rs = EXS, EXS+2
            t0, t1, t2, t3 = ET, ET+1, ET+2, ET+3
            for nt in range(5):
                for r in range(4):
                    o = ACF + nt*4 + r
                    src = lambda base: base + 2*nt + (r >> 1)
                    if r & 1: a(f"  v_and_b32 v{t0}, 0xffff0000, v{src(EB)}")
                    else: a(f"  v_lshlrev_b32 v{t0}, 16, v{src(EB)}")
                    a(f"  v_add_f32 v{o}, v{o}, v{t0}")
                    a(f"  v_mul_f32 v{t1}, 0xbfb8aa3b, v{o}")
                    a(f"  v_exp_f32 v{t1}, v{t1}")
                    if r & 1: a(f"  v_and_b32 v{t2}, 0xffff0000, v{src(EX)}\n  v_and_b32 v{t3}, 0xffff0000, v{src(ED)}")
                    else: a(f"  v_lshlrev_b32 v{t2}, 16, v{src(EX)}\n  v_lshlrev_b32 v{t3}, 16, v{src(ED)}")
                    a(f"  v_add_f32 v{t1}, 1.0, v{t1}")
                    a(f"  v_rcp_f32 v{t1}, v{t1}")
                    a(f"  v_sub_f32 v{t0}, v{t2}, v{m}")
                    bfround(a, t0)
                    a(f"  v_mul_f32 v{t0}, v{t0}, v{rs}")
                    bfround(a, t0)
                    a(f"  v_mul_f32 v{t0}, v{t0}, v{t3}")
                    bfround(a, t0)
                    a(f"  v_mul_f32 v{o}, v{o}, v{t1}")
                    d = ET + 4 + r
                    a(f"  v_fma_f32 v{d}, v{t0}, v{o}, v{t2}")
                a(f"  v_mov_b32 v{EB+2*nt}, v{ET+4}\n  v_mov_b32 v{EB+2*nt+1}, v{ET+5}\n  v_mov_b32 v{ED+2*nt}, v{ET+6}\n  v_mov_b32 v{ED+2*nt+1}, v{ET+7}")
        MI = P.get('mi', 0); mcol = []
        if MI: mid_epilogue(lambda t: mcol.extend(t.split('\n')))
        a("  s_barrier")
        if ST: stamp(a, 74, ST)
        for nt in range(5): wread(0, nt)
        for q in range(NQ):
            nq = q + 1
            if nq < NQ and nq % 4 == 0: a("  s_barrier")
            a(f"  s_waitcnt vmcnt({vm.after(('h', q))})")
            if q == 0:
                if P.get('wb2', 0) & 2: a("  buffer_wbl2 sc1\n  s_waitcnt vmcnt(0)")
                a(f"""  s_add_u32 s60, s78, {HFS_OFF}
  v_mov_b32 v{ET+9}, s60
  v_mov_b32 v{ET+10}, s79
  s_mov_b64 exec, 1
  buffer_store_dword v{ET+10}, v{ET+9}, s[36:39], 0 offen sc1
  s_mov_b64 exec, -1""")
                vm.add('f')
            for nt in range(5):
                a(f"  s_waitcnt lgkmcnt({4 if nq < NQ else 4 - nt})")
                mfma(q, nt)
                if nq < NQ: wread(nq, nt)
                if MI and q >= 48 + P.get('mi0', 0) and (q > 48 or nt == 4):
                    for t in mcol[:MI]: a(t)
                    del mcol[:MI]
            pq = q + PF
            if pq == 48 - 8:
                a(f"  buffer_load_dword v{ET+11}, v{ET+8}, s[36:39], 0 offen sc1"); vm.add('p')
            if pq == 48:
                a(f"""  s_waitcnt vmcnt({vm.after('p')})
  v_cmp_ne_u32 vcc, s79, v{ET+11}
  s_cmp_eq_u64 vcc, 0
  s_cbranch_scc1 K2_sok
  s_mov_b32 s73, {LIM}
K2_spoll:
  buffer_load_dword v{ET+11}, v{ET+8}, s[36:39], 0 offen sc1
  s_waitcnt vmcnt(0)
  v_cmp_ne_u32 vcc, s79, v{ET+11}
  s_cmp_eq_u64 vcc, 0
  s_cbranch_scc1 K2_sok
  s_sub_u32 s73, s73, 1
  s_cmp_lg_u32 s73, 0
  s_cbranch_scc1 K2_spoll
K2_sok:""")
            if RP and pq < 48: hupto(min(pq + 1, RP + 2*(q + 1)))
            elif pq < NQ: hupto(pq + 1)
            if ELATE and ELATE <= q < ELATE + 6: eload(q - ELATE)
            if q == 47:
                if ST: stamp(a, 76, ST)
                a(f"  s_waitcnt vmcnt({vm.after('e')})")
                if not MI: mid_epilogue()
                if ST: stamp(a, 82, ST)
        for t in mcol: a(t)
        if ST: stamp(a, 72, ST)
        a("  s_nop 7\n  s_nop 1")
        for nt in range(5):
            for r in range(4):
                b = [EB+2*nt, EB+2*nt+1, ED+2*nt, ED+2*nt+1][r]
                a(f"  v_fma_f32 v{ACS+nt*4+r}, v{ACS+nt*4+r}, v{ACF+nt*4+r}, v{b}")
            a(f"  buffer_store_dwordx4 v[{ACS+nt*4}:{ACS+nt*4+3}], v7, s[56:59], 0 offen offset:{nt*64} sc1")
        a("  s_waitcnt vmcnt(0)")
        if ST:
            stamp(a, 70, ST)
            a(f"  s_cmp_lg_u32 s28, {P.get('stamp_wave',0)}\n  s_cbranch_scc1 K1_end\n  s_mov_b64 exec, 1")
            if P.get('dbg'): stamp_dbg(a, [80,84,86,88,90,92,94,96,98,74,76,82,72,70], 0, P['dbg'])
            else: stamp_store(a, 48, 2, [80,84,86,88,90,92,94,96,98,74,76,82,72,70], 20, ST, base=0)
        a("  s_endpgm")
    def loader(self, a):
        if self.P.get('k2v') == 2: return self.k2v2(a, False)
        P = self.P; LIM = P.get('poll_limit', 1 << 16)
        a(f"""K2_loader:
  s_and_b32 s60, s2, 7
  s_lshr_b32 s61, s2, 3
  s_and_b32 s62, s60, 1
  s_lshl_b32 s62, s62, 2
  s_and_b32 s63, s61, 3
  s_add_u32 s64, s62, s63                   ; ct
""")
        srd_off(a, 48, 12, WF_OFF, WF_BYTES)
        srd(a, 52, 12, 0x100000)
        a(f"""
  v_lshlrev_b32 v3, 4, v0
  v_mov_b32 v8, {F_TAG}
  ds_read_b32 v8, v8
  v_add_u32 v5, {WFL_OFF}, v3
  s_sub_u32 s65, s28, 4
  s_mul_i32 s66, s65, 7168                  ; lw*7168
  s_mul_i32 s67, s64, {88*5120}
  s_add_u32 s67, s67, s66
  v_add_u32 v4, s67, v3                     ; W voffset
  s_mov_b32 s73, {LIM}
  s_waitcnt lgkmcnt(0)
""")
        def wait4(lbl, addr):
            a(f"""  v_mov_b32 v9, {addr}
{lbl}:
  ds_read_b128 v[12:15], v9
  s_waitcnt lgkmcnt(0)
  v_and_b32 v12, v12, v13
  v_and_b32 v14, v14, v15
  v_and_b32 v12, v12, v14
  s_nop 0
  v_readfirstlane_b32 s60, v12
  s_cmp_eq_u32 s60, 0
  s_cbranch_scc1 {lbl}""")
        def wait1(lbl, addr):
            a(f"  v_mov_b32 v9, {addr}")
            poll_lds(a, lbl, 9, 12, 0)
        if P.get('wsync'):
            def gate(g, sfx):
                if 'f' in g: wait4('K2_gf' + sfx, F_FD)
                if 'h' in g: wait1('K2_gh' + sfx, k1_gen.F_HIN)
                if 'p' in g: wait4('K2_gp' + sfx, k1_gen.F_P2)
            gate(P.get('g0', ''), '0')
            wait1('K2_gw', k1_gen.F_W)
            a("  s_cmp_eq_u32 s65, 2\n  s_cbranch_scc1 K2_ld6")
            for n in (7, 6):
                if n == 6: a("K2_ld6:")
                def wissue(j):
                    sa = slot_addr(j % NB)
                    a(f"  s_mov_b32 s68, {j*20480}\n  s_add_u32 m0, s66, {sa}\n  s_add_u32 s69, s68, 4096")
                    for i in range(4): a(f"  buffer_load_dwordx4 v4, s[48:51], s68 offen offset:{i*1024} lds")
                    a(f"  s_add_u32 m0, s66, {sa+4096}\n  s_nop 0")
                    for i in range(n-4): a(f"  buffer_load_dwordx4 v4, s[48:51], s69 offen offset:{i*1024} lds")
                W0 = P.get('w0', 2)
                for j in range(W0): wissue(j)
                gate(P.get('g1', ''), f'1_{n}')
                for j in range(W0, NB): wissue(j)
                issued = NB
                for s in range(NS):
                    a(f"  s_waitcnt vmcnt({min(n*(issued - s - 1), 63)})\n  s_barrier")
                    if s >= 2 and s + 4 < NS:
                        wissue(s + 4); issued += 1
                a("  s_endpgm")
            return
        if P.get('rot'): self.rot_calc(a, 70, 71, 20480)
        if P.get('prepoll'): a("  s_waitcnt vmcnt(0)\n  s_branch K2_wchk")
        if P.get('fd_first') == 1:
            a(f"""  v_mov_b32 v9, {F_FD}
K2_fd0:
  ds_read_b128 v[12:15], v9
  s_waitcnt lgkmcnt(0)
  v_and_b32 v12, v12, v13
  v_and_b32 v14, v14, v15
  v_and_b32 v12, v12, v14
  s_nop 0
  v_readfirstlane_b32 s60, v12
  s_cmp_eq_u32 s60, 0
  s_cbranch_scc1 K2_fd0""")
        if P.get('hin_first'):
            a(f"  v_mov_b32 v9, {k1_gen.F_HIN}")
            poll_lds(a, 'K2_hin0', 9, 12, 0)
        if P.get('w1poll'):
            a(f"  s_cmp_eq_u32 s65, 0\n  s_cbranch_scc1 K2_wpoll\n  v_mov_b32 v9, {k1_gen.F_W}")
            poll_lds(a, 'K2_w1', 9, 12, 0)
            a("  s_branch K2_wok2")
        a(f"""K2_wpoll:
  buffer_load_dwordx4 v[12:15], v5, s[52:55], 0 offen sc1
  s_waitcnt vmcnt(0)
K2_wchk:
  v_xor_b32 v12, v12, v8
  v_xor_b32 v13, v13, v8
  v_xor_b32 v14, v14, v8
  v_xor_b32 v15, v15, v8
  v_or3_b32 v12, v12, v13, v14
  v_or_b32 v12, v12, v15
  v_cmp_ne_u32 vcc, 0, v12
  s_cmp_eq_u64 vcc, 0
  s_cbranch_scc1 K2_wok
  s_sub_u32 s73, s73, 1
  s_cmp_lg_u32 s73, 0
  s_cbranch_scc1 K2_wpoll
K2_wok:""")
        if P.get('w1poll'): a(f"  v_mov_b32 v9, {k1_gen.F_W}\n  v_mov_b32 v12, 1\n  ds_write_b32 v9, v12\nK2_wok2:")
        a("""  s_cmp_eq_u32 s65, 2
  s_cbranch_scc1 K2_ld6
""")
        for n in (7, 6):
            if n == 6: a("K2_ld6:")
            def wissue(j):
                sa = slot_addr(j % NB)
                if P.get('rot'): self.rot_next(a, j, 68, 70, 71, 20480)
                else: a(f"  s_mov_b32 s68, {j*20480}")
                a(f"  s_add_u32 m0, s66, {sa}\n  s_add_u32 s69, s68, 4096")
                for i in range(4): a(f"  buffer_load_dwordx4 v4, s[48:51], s68 offen offset:{i*1024} lds")
                a(f"  s_add_u32 m0, s66, {sa+4096}\n  s_nop 0")
                for i in range(n-4): a(f"  buffer_load_dwordx4 v4, s[48:51], s69 offen offset:{i*1024} lds")
            W0 = NB if P.get('fd_first') else P.get('w_first', NB)
            if P.get('g1'):
                W1 = P.get('w0', 2)
                for j in range(W1): wissue(j)
                PC = P.get('pace', 0)
                for j in range(W1, W1 + PC):
                    a(f"  s_waitcnt vmcnt({n*(W1-1)})"); wissue(j)
                W1 += PC
                if 'h' in P['g1']: wait1(f'K2_g1h{n}', k1_gen.F_HIN)
                if 'p' in P['g1']: wait4(f'K2_g1p{n}', k1_gen.F_P2)
                for j in range(W1, NB): wissue(j)
            else:
                for j in range(W0): wissue(j)
            if W0 < NB:
                a(f"""  v_mov_b32 v9, {F_FD}
K2_fd{n}:
  ds_read_b128 v[12:15], v9
  s_waitcnt lgkmcnt(0)
  v_and_b32 v12, v12, v13
  v_and_b32 v14, v14, v15
  v_and_b32 v12, v12, v14
  s_nop 0
  v_readfirstlane_b32 s60, v12
  s_cmp_eq_u32 s60, 0
  s_cbranch_scc1 K2_fd{n}""")
                for j in range(W0, NB): wissue(j)
            issued = NB
            for s in range(NS):
                a(f"  s_waitcnt vmcnt({min(n*(issued - s - 1), 63)})\n  s_barrier")
                if s >= 2 and s + 4 < NS:
                    wissue(s + 4); issued += 1
            a("  s_endpgm")
def fused(P):
    P = dict(P); P['fuse'] = Fuse(P)
    k, l = k1_gen.k1(P)
    return build([k], [l])
if __name__ == '__main__':
    B = dict(prod=1, bump=1, pre0=1, relay=1, pre0b=1)
    B['wf_at'] = 0
    B.update(w_first=0, k2map=1, wf_at=3, g_late=2)
    B.update(fd_first=1)
    B.update(ep_plain=1)
    B.update(w1poll=1, ffn_first=1, cfast=1, p2flag=1)
    B.update(g1='p')
    E = dict(B, k2v=2, early_hf=1, fw0=2)
    E2 = dict(E, prio=2, sprio=(3,0), sw_late=2, early_hf=2)
    E3 = dict(E, prio=3)
    E4 = dict(E3, tail2=1)
    E5 = dict(E4, tail3=1)
    V = dict(f0=dict(E5), f1=dict(E5, lw=3), f2=dict(E5, lw=2), f3=dict(E5, lw=3, fw0=0), f4=dict(E5, lw=3, fw0=1))
    for n, P in V.items():
        open(f'g/{n}.s', 'w').write(fused(P))
        open(f'g/{n}_st.s', 'w').write(fused(dict(P, stamps=True)))
```
